```python
import torch

def _softmax(x, axis=-1):
    return torch.softmax(x, dim=axis)
def _gelu(x):
    return torch.nn.functional.gelu(x, approximate="tanh")
def _silu(x):
    return torch.nn.functional.silu(x)
def _sigmoid(x):
    return torch.sigmoid(x)
def _layernorm(x, axis=-1, eps=1e-5):
    m = x.mean(dim=axis, keepdim=True)
    v = x.var(dim=axis, keepdim=True, unbiased=False)
    return (x - m) / torch.sqrt(v + eps)
def _scatter_add(tgt, idx, src, axis=0):
    return tgt.clone().index_add_(axis, idx, src)
def _segment_sum(src, seg, n):
    out = torch.zeros((n,) + src.shape[1:], dtype=src.dtype)
    return out.index_add_(0, seg, src)
def _pad(x, pw):
    flat = tuple(v for pair in reversed(pw) for v in pair)
    return torch.nn.functional.pad(x, flat)

kernel_name = 'interleave_layers__linear_attn_block__geglu_ffn__prompt'

def setup_inputs():

    _w = (lambda a: (lambda t: t.to(torch.bfloat16) if t.is_floating_point() else t)(torch.as_tensor(a)))
    def _A_setup():
        B, S, D = 1, 2048, 640
        return {
            "x": _w((lambda *s: torch.randn(*s, dtype=torch.bfloat16) * 0.05)(B, S, D)),
            "wqkv": _w((lambda *s: torch.randn(*s, dtype=torch.bfloat16) * 0.05)(D, 3 * D)),
            "wo": _w((lambda *s: torch.randn(*s, dtype=torch.bfloat16) * 0.05)(D, D)),
        }
    _A_in = _A_setup()

    def _B_setup():
        B, S, D, F = 1, 2048, 640, 1536
        return {
            "x": _w((lambda *s: torch.randn(*s, dtype=torch.bfloat16) * 0.05)(B, S, D)),
            "w_gate": _w((lambda *s: torch.randn(*s, dtype=torch.bfloat16) * 0.05)(D, F)),
            "w_up": _w((lambda *s: torch.randn(*s, dtype=torch.bfloat16) * 0.05)(D, F)),
            "w_down": _w((lambda *s: torch.randn(*s, dtype=torch.bfloat16) * 0.05)(F, D)),
        }
    _B_in = _B_setup()

    return {
        "A_x": _A_in["x"],
        "A_wqkv": _A_in["wqkv"],
        "A_wo": _A_in["wo"],
        "B_x": _B_in["x"],
        "B_w_gate": _B_in["w_gate"],
        "B_w_up": _B_in["w_up"],
        "B_w_down": _B_in["w_down"],
    }

def reference(A_x, A_wqkv, A_wo, B_x, B_w_gate, B_w_up, B_w_down):
    def _A_ref(x, wqkv, wo):
        B, S, D = x.shape
        H = 32; Dh = D // H
        qkv = (lambda x, *d: x.permute(*d))((x @ wqkv).reshape(B, S, 3, H, Dh), 2, 0, 3, 1, 4)
        q, k, v = qkv[0], qkv[1], qkv[2]
        phi = lambda t: torch.where(t > 0, t + 1, torch.exp(t)) + 1e-6
        pq, pk = phi(q), phi(k)
        kv = torch.einsum("bhsd,bhse->bhde", pk, v)
        z = torch.einsum("bhsd->bhd", pk)
        num = torch.einsum("bhqd,bhde->bhqe", pq, kv)
        den = torch.einsum("bhqd,bhd->bhq", pq, z)[..., None] + 1e-6
        o = num / den
        return (lambda x, *d: x.permute(*d))(o, 0, 2, 1, 3).reshape(B, S, D) @ wo

    def _B_ref(x, w_gate, w_up, w_down):
        return (_gelu(x @ w_gate) * (x @ w_up)) @ w_down

    x = A_x
    x = x + _A_ref(_layernorm(x, axis=-1), A_wqkv, A_wo)
    x = x + _B_ref(_layernorm(x, axis=-1), B_w_gate, B_w_up, B_w_down)
    x = x + _A_ref(_layernorm(x, axis=-1), A_wqkv, A_wo)
    x = x + _B_ref(_layernorm(x, axis=-1), B_w_gate, B_w_up, B_w_down)
    return x
```

```python
import re

REG_RE = re.compile(r'^(-|abs\()?([vas])(\d+)\)?$')
RNG_RE = re.compile(r'^(-)?([vas])\[(\d+):(\d+)\]$')
TRANS = ('v_exp_f32', 'v_log_f32', 'v_rcp_f32', 'v_rsq_f32', 'v_sqrt_f32', 'v_sin_f32', 'v_cos_f32')


def regs_of(tok):
    tok = tok.strip()
    m = REG_RE.match(tok)
    if m:
        return [(m.group(2), int(m.group(3)))]
    m = RNG_RE.match(tok)
    if m:
        return [(m.group(2), i) for i in range(int(m.group(3)), int(m.group(4)) + 1)]
    if tok == 'vcc':
        return [('s', 'vcc')]
    if tok == 'exec':
        return [('s', 'exec')]
    if tok == 'm0':
        return [('s', 'm0')]
    return []


def V(i, n=1):
    return f"v{i}" if n == 1 else f"v[{i}:{i+n-1}]"


def A(i, n=1):
    return f"a{i}" if n == 1 else f"a[{i}:{i+n-1}]"


def S(i, n=1):
    return f"s{i}" if n == 1 else f"s[{i}:{i+n-1}]"


def R(r, n=1):
    return V(r[1], n) if r[0] == 'v' else A(r[1], n)


class Asm:
    def __init__(self):
        self.lines = []
        self.pos = 0
        self.valu_w = {}
        self.trans_w = {}
        self.mfma_d = {}
        self.mfma_c = {}
        self.valu_sw = {}
        self.m0_w = -100
        self.store_data = {}
        self.dot_w = {}
        self.vm_issued = 0
        self.vm_done = 0
        self.lg_issued = 0
        self.lg_done = 0
        self.max_vm_out = 0
        self.nops = 0
        self.count = {}

    def raw(self, text):
        self.lines.append(text)

    def comment(self, text):
        self.lines.append("    ; " + text)

    def label(self, name):
        self.lines.append(name + ":")

    def nop(self, n):
        while n > 0:
            k = min(n, 16)
            self.lines.append(f"    s_nop {k-1}")
            self.pos += k
            self.nops += k
            n -= k

    def flush_hazards(self):
        need = 0
        for r, (p, passes, f, sz) in self.mfma_d.items():
            need = max(need, (12 if passes == 8 else 8) - (self.pos - p - 1))
        for r, p in self.valu_w.items():
            need = max(need, 2 - (self.pos - p - 1))
        for r, p in self.valu_sw.items():
            need = max(need, 5 - (self.pos - p - 1))
        for r, p in self.store_data.items():
            need = max(need, 2 - (self.pos - p - 1))
        for r, (p, dm) in self.dot_w.items():
            need = max(need, 3 - (self.pos - p - 1))
        need = max(need, 1 - (self.pos - self.m0_w - 1))
        if need > 0:
            self.nop(need)

    def I(self, text, count=True):
        text = text.strip()
        body = text.split(';')[0].strip()
        parts = body.split(None, 1)
        mn = parts[0]
        rest = parts[1] if len(parts) > 1 else ''
        ops = []
        cur = ''
        depth = 0
        for ch in rest:
            if ch in '[(':
                depth += 1
            if ch in '])':
                depth -= 1
            if ch == ',' and depth == 0:
                ops.append(cur.strip())
                cur = ''
            else:
                cur += ch
        if cur.strip():
            ops.append(cur.strip())
        mods = ''
        if ops:
            last = ops[-1].split(None, 1)
            ops[-1] = last[0]
            mods = last[1] if len(last) > 1 else ''
        self.count[mn] = self.count.get(mn, 0) + 1

        is_mfma = mn.startswith('v_mfma')
        is_valu = mn.startswith('v_') and not is_mfma
        is_vmem = mn.startswith('buffer_') or mn.startswith('global_')
        is_ds = mn.startswith('ds_')
        is_salu = mn.startswith('s_')
        dst, src = [], []
        if is_mfma:
            dst = regs_of(ops[0])
            srcA, srcB, srcC = regs_of(ops[1]), regs_of(ops[2]), regs_of(ops[3])
            src = srcA + srcB + srcC
            passes = 8 if '32x32x16' in mn else 4
        elif is_valu:
            dst = regs_of(ops[0])
            k = 1
            if mn.startswith(('v_add_co', 'v_sub_co', 'v_addc_co', 'v_subb_co')):
                dst += regs_of(ops[1])
                k = 2
            for o in ops[k:]:
                src += regs_of(o)
            if 'permlane' in mn and 'swap' in mn:
                dst += regs_of(ops[1])
                src += regs_of(ops[0])
            if mn.startswith(('v_fmac', 'v_dot2c', 'v_pk_fmac')) or 'dpp' in mn or mn.startswith('v_writelane'):
                src += regs_of(ops[0])
            if mn.startswith('v_cndmask') and len(ops) == 3:
                src += [('s', 'vcc')]
        elif is_vmem:
            if 'load' in mn and ' lds' not in (' ' + mods):
                dst = regs_of(ops[0])
                for o in ops[1:]:
                    src += regs_of(o)
            else:
                for o in ops:
                    src += regs_of(o)
        elif is_ds:
            if mn.startswith('ds_read') or mn.startswith('ds_bpermute') or mn.startswith('ds_swizzle'):
                dst = regs_of(ops[0])
                for o in ops[1:]:
                    src += regs_of(o)
            else:
                for o in ops:
                    src += regs_of(o)
        elif is_salu:
            if mn.startswith(('s_cmp', 's_cbranch', 's_branch', 's_waitcnt', 's_barrier', 's_nop', 's_endpgm', 's_sleep',
                              's_setprio', 's_bitcmp')):
                for o in ops:
                    src += regs_of(o)
            else:
                dst = regs_of(ops[0]) if ops else []
                for o in ops[1:]:
                    src += regs_of(o)

        need = 0

        def req(p, n):
            nonlocal need
            need = max(need, n - (self.pos - p - 1))

        vec = lambda L: [r for r in L if r[0] in 'va']
        sca = lambda L: [r for r in L if r[0] == 's']
        if is_mfma:
            for r in src:
                if r in self.valu_w:
                    req(self.valu_w[r], 2)
            for r in srcA + srcB:
                if r in self.mfma_d:
                    p, ps, f, sz = self.mfma_d[r]
                    req(p, 12 if ps == 8 else 8)
            for r in srcC:
                if r in self.mfma_d:
                    p, ps, f, sz = self.mfma_d[r]
                    if not (ps == passes and f == srcC[0] and sz == len(srcC)):
                        req(p, 10 if ps == 8 else 6)
            for r in dst:
                if r in self.mfma_d and r not in srcC:
                    p, ps, f, sz = self.mfma_d[r]
                    req(p, 10 if ps == 8 else 6)
        else:
            for r in vec(src) + vec(dst):
                if r in self.mfma_d:
                    p, ps, f, sz = self.mfma_d[r]
                    req(p, 12 if ps == 8 else 8)
        for r in vec(src) + vec(dst):
            if r in self.dot_w:
                p, dm = self.dot_w[r]
                chain = (dm == mn and r in dst and src.count(r) == 1)
                if not chain:
                    req(p, 3)
        if is_valu:
            for r in vec(dst):
                if r in self.mfma_c:
                    p, ps = self.mfma_c[r]
                    req(p, 7 if ps == 8 else 3)
                if r in self.store_data:
                    req(self.store_data[r], 2)
            for r in sca(src):
                if r in self.valu_sw:
                    req(self.valu_sw[r], 4 if 'lane' in mn else 2)
            for r in vec(src):
                if r in self.trans_w:
                    req(self.trans_w[r], 1)
                if r in self.valu_w:
                    if mn.startswith(('v_readfirstlane', 'v_readlane')):
                        req(self.valu_w[r], 1)
                    if 'permlane' in mn or 'dpp' in mn or 'row_' in mods or 'quad_perm' in mods:
                        req(self.valu_w[r], 2)
        if is_vmem or is_ds:
            for r in sca(src):
                if r in self.valu_sw:
                    req(self.valu_sw[r], 5)
            for r in vec(src):
                if r in self.trans_w:
                    req(self.trans_w[r], 1)
            for r in vec(dst):
                if r in self.store_data:
                    req(self.store_data[r], 2)
                if r in self.mfma_c:
                    p, ps = self.mfma_c[r]
                    req(p, 7 if ps == 8 else 3)
            if is_vmem and ' lds' in (' ' + mods):
                req(self.m0_w, 1)
        if is_salu:
            for r in sca(src):
                if r in self.valu_sw:
                    req(self.valu_sw[r], 2)
        if need > 0:
            self.nop(need)

        self.lines.append("    " + text)
        p = self.pos
        if mn == 's_nop':
            self.pos += int(ops[0]) + 1
        else:
            self.pos += 1

        for r in dst:
            self.valu_w.pop(r, None)
            self.trans_w.pop(r, None)
            self.dot_w.pop(r, None)
            if not is_mfma:
                self.mfma_d.pop(r, None)
            self.valu_sw.pop(r, None)
        if is_mfma:
            for r in dst:
                self.mfma_d[r] = (p, passes, dst[0], len(dst))
            for r in srcC:
                self.mfma_c[r] = (p, passes)
        elif is_valu:
            for r in dst:
                if r[0] in 'va':
                    self.valu_w[r] = p
                    if mn.startswith('v_dot'):
                        self.dot_w[r] = (p, mn)
                    if mn.startswith(TRANS):
                        self.trans_w[r] = p
                else:
                    self.valu_sw[r] = p
        elif is_salu:
            if ('s', 'm0') in dst:
                self.m0_w = p
        if is_vmem and 'store' in mn and ('x4' in mn or 'x3' in mn):
            for r in regs_of(ops[0]):
                self.store_data[r] = p
        tok = None
        if count and is_vmem and not mn.startswith(('buffer_wbl2', 'buffer_inv')):
            self.vm_issued += 1
            tok = ('vm', self.vm_issued)
            out = self.vm_issued - self.vm_done
            self.max_vm_out = max(self.max_vm_out, out)
            assert out <= 63, f"vmcnt overflow at: {text}"
        if is_ds:
            self.lg_issued += 1
            tok = ('lg', self.lg_issued)
        return tok

    def wait(self, *toks):
        vm = max([t[1] for t in toks if t and t[0] == 'vm'], default=0)
        lg = max([t[1] for t in toks if t and t[0] == 'lg'], default=0)
        s = []
        if vm > self.vm_done:
            s.append(f"vmcnt({self.vm_issued - vm})")
            self.vm_done = vm
        if lg > self.lg_done:
            n = self.lg_issued - lg
            if n > 15:
                n = 15
            s.append(f"lgkmcnt({n})")
            self.lg_done = self.lg_issued - n
        if s:
            self.I("s_waitcnt " + " ".join(s))

    def drain_vm(self, force=False):
        if force or self.vm_done < self.vm_issued:
            self.I("s_waitcnt vmcnt(0)")
        self.vm_done = self.vm_issued

    def drain_lg(self, force=False):
        if force or self.lg_done < self.lg_issued:
            self.I("s_waitcnt lgkmcnt(0)")
        self.lg_done = self.lg_issued

    def exec_mask(self, lo, hi):
        if lo == 0xffffffff and hi == 0xffffffff:
            self.I("s_mov_b64 exec, -1")
        else:
            self.I(f"s_mov_b32 exec_lo, 0x{lo:x}")
            self.I(f"s_mov_b32 exec_hi, 0x{hi:x}")

    _STATE = ('pos', 'valu_w', 'trans_w', 'mfma_d', 'mfma_c', 'valu_sw', 'm0_w', 'store_data', 'dot_w',
              'vm_issued', 'vm_done', 'lg_issued', 'lg_done')

    def save(self):
        import copy
        return {k: copy.copy(getattr(self, k)) for k in self._STATE}

    def restore(self, st):
        import copy
        for k in self._STATE:
            setattr(self, k, copy.copy(st[k]))

    def dual(self, cond_sgpr, fn, tag):
        self.I(f"s_cmp_eq_u32 {cond_sgpr}, 0")
        self.I(f"s_cbranch_scc1 {tag}_slow")
        st = self.save()
        fn('')
        self.flush_hazards()
        self.I(f"s_branch {tag}_join")
        self.restore(st)
        self.label(f"{tag}_slow")
        fn('sc1')
        self.flush_hazards()
        self.label(f"{tag}_join")

    def last_vm(self):
        return ('vm', self.vm_issued)

    def last_lg(self):
        return ('lg', self.lg_issued)

    def text(self):
        return "\n".join(self.lines) + "\n"
```

```python
from asmlib import *
from layout import *
from gen_pack import ids, srd, OOB

RING = 144
L_MISC = RING * 1024
L_CS3 = L_MISC
L_KVA = L_MISC + 768
L_STW = L_KVA + 3328
L_PQT = L_STW + 1024
L_END = L_PQT + 4 * 2560
assert L_END <= 163840
L_KVW = 128 * 1024
L_EX = 80 * 1024
LDS_BYTES = 163840

WS, OUT, WSZ = 4, 8, 44
sG, sM, sW, sHF, sSL, sLAY, sFAST, sSEQ = 12, 13, 14, 15, 16, 17, 18, 19
sW1, sW3, sW2, sW4 = 20, 21, 22, 23
sXA, sXD, sSTR, sSTW = 24, 25, 26, 27
sOW, sOA, sHW, sHA = 28, 29, 33, 34
sKVW, sKVR, sRFW, sRFP, sCFW, sCFP = 38, 39, 40, 41, 42, 43
sT0, sT1, sT2, sT3 = 48, 49, 50, 51
sA, sB, sC = 52, 53, 54
sEX = 56
sLOG2E, sEPS6, sC0, sC1 = 60, 62, 64, 66
sMLO16, sM31 = 68, 70
sSPIN, sWV16 = 72, 73
sSTAMP = 74
sTM = 76

vL16, vLANE, vR1, vR2 = 0, 1, 2, 3
vRES = 4
vCS1 = 14
vXD4, vXD2, vSTL, vHST, vOST = 18, 19, 20, 21, 22
vB0, vB1, vB2, vKA0, vKA1 = 23, 24, 25, 26, 27
vPQW, vPQR0, vPQR1, vSTWW, vSTWR = 28, 29, 30, 31, 32
vCS3R, vT16, vKAW, vPOLL, vONES = 33, 34, 35, 36, 37
vPTX, vPTO, vPTH = 38, 39, 40
vTMP = 41
W0 = 44


def f2u(x):
    import struct
    return struct.unpack('<I', struct.pack('<f', x))[0]


class Main:
    def __init__(self, a, name, cfg):
        self.a = a
        self.name = name
        self.cfg = cfg
        self.nlab = 0
        self.nstamp = 0

    def lab(self, p):
        self.nlab += 1
        return f"{self.name}_{p}{self.nlab}"

    def stamp(self, idx):
        if not self.cfg.get('stamps'):
            return
        a = self.a
        a.I(f"s_memtime {S(sTM,2)}")
        a.drain_lg(force=True)
        a.I(f"v_mov_b32 {V(vTMP)}, {S(sTM)}")
        a.I(f"v_mov_b32 {V(vTMP+1)}, 0")
        a.I("s_mov_b64 exec, 1")
        a.I(f"buffer_store_dword {V(vTMP)}, {V(vTMP+1)}, {S(WS,4)}, {S(sSTAMP)} offen offset:{idx*4}", count=False)
        a.I("s_mov_b64 exec, -1")

    def ring_addr(self, slot):
        off = slot * 1024
        if off < 65536:
            return vL16, off
        if off < 131072:
            return vR1, off - 65536
        return vR2, off - 131072

    def dma_step(self, sbase, j, srd_=WS):
        a = self.a
        out = []

        def first():
            a.I(f"s_add_u32 {S(sC)}, {S(sbase)}, {j*16384}")
            a.I(f"s_add_u32 m0, {S(sWV16)}, {((16*j) % RING)*1024}")
            return a.I(f"buffer_load_dwordx4 {V(vL16)}, {S(srd_,4)}, {S(sC)} offen lds")
        out.append(first)
        for q in (1, 2, 3):
            out.append(lambda q=q: a.I(f"buffer_load_dwordx4 {V(vL16)}, {S(srd_,4)}, {S(sC)} offen offset:{q*1024} lds"))
        return out

    def seq_loads(self, sbase, srun, regs, mod=""):
        a = self.a
        out = []
        for i, r in enumerate(regs):
            def f(i=i, r=r):
                if i == 0:
                    a.I(f"s_mov_b32 {S(srun)}, {S(sbase)}")
                elif i % 4 == 0:
                    a.I(f"s_add_u32 {S(srun)}, {S(srun)}, 4096")
                return a.I(f"buffer_load_dwordx4 {R(r,4)}, {V(vL16)}, {S(WS,4)}, {S(srun)} offen offset:{(i%4)*1024} {mod}")
            out.append(f)
        return out

    def poll(self, sbase, starget, plus=0):
        a = self.a
        L, D = self.lab("poll"), self.lab("pdone")
        if plus:
            a.I(f"s_add_u32 {S(sT0)}, {S(starget)}, {plus}")
            starget = sT0
        a.I(f"s_mov_b32 {S(sSPIN)}, 0x20000")
        a.flush_hazards()
        a.label(L)
        a.I(f"buffer_load_dword {V(vTMP)}, {V(vPOLL)}, {S(WS,4)}, {S(sbase)} offen sc1")
        a.drain_vm(force=True)
        a.I(f"v_cmp_gt_u32 vcc, {S(starget)}, {V(vTMP)}")
        a.I(f"s_cbranch_vccz {D}")
        a.I(f"s_sub_u32 {S(sSPIN)}, {S(sSPIN)}, 1")
        a.I(f"s_cbranch_scc0 {L}")
        a.I(f"s_branch {self.name}_end")
        a.label(D)

    def publish_row(self):
        a = self.a
        a.I(f"s_add_u32 {S(sSEQ)}, {S(sSEQ)}, 1")
        a.drain_vm(force=True)
        a.I("s_barrier")
        L = self.lab("nf")
        a.I(f"s_cmp_lg_u32 {S(sW)}, 0")
        a.I(f"s_cbranch_scc1 {L}")
        a.I(f"v_mov_b32 {V(vTMP)}, {S(sSEQ)}")
        a.I(f"v_mov_b32 {V(vTMP+1)}, 0")
        a.I("s_mov_b64 exec, 1")
        a.dual(S(sFAST), lambda mod: a.I(f"buffer_store_dword {V(vTMP)}, {V(vTMP+1)}, {S(WS,4)}, {S(sRFW)} offen {mod}", count=False), self.lab("fl"))
        a.I("s_mov_b64 exec, -1")
        a.label(L)

    def stats_loads(self, sbase_off, dst):
        a = self.a
        if sbase_off:
            a.I(f"s_add_u32 {S(sT0)}, {S(sSTR)}, {sbase_off}")
        sb = sT0 if sbase_off else sSTR
        t = None
        for q in range(4):
            t = a.I(f"buffer_load_dwordx2 {V(dst+2*q,2)}, {V(vSTL)}, {S(WS,4)}, {S(sb)} offen offset:{q*1024} sc1")
        return t

    def stats_reduce(self, raw, tok):
        a = self.a
        s = []
        s.append(lambda: (a.wait(tok), a.I(f"v_pk_add_f32 {V(raw,2)}, {V(raw,2)}, {V(raw+2,2)}")))
        s.append(lambda: a.I(f"v_pk_add_f32 {V(raw+4,2)}, {V(raw+4,2)}, {V(raw+6,2)}"))
        s.append(lambda: a.I(f"v_pk_add_f32 {V(raw,2)}, {V(raw,2)}, {V(raw+4,2)}"))
        s.append(lambda: a.I(f"v_mov_b32 {V(raw+2)}, {V(raw)}"))
        s.append(lambda: a.I(f"v_mov_b32 {V(raw+3)}, {V(raw+1)}"))
        s.append(lambda: a.I(f"v_permlane32_swap_b32 {V(raw)}, {V(raw+2)}"))
        s.append(lambda: a.I(f"v_permlane32_swap_b32 {V(raw+1)}, {V(raw+3)}"))
        s.append(lambda: a.I(f"v_pk_add_f32 {V(raw,2)}, {V(raw,2)}, {V(raw+2,2)}"))
        s.append(lambda: a.I(f"v_mul_f32 {V(raw+2)}, 0x{f2u(-1.0/640):x}, {V(raw)}"))
        s.append(lambda: a.I(f"v_mul_f32 {V(raw+3)}, 0x{f2u(1.0/640):x}, {V(raw+1)}"))
        s.append(lambda: a.I(f"v_fma_f32 {V(raw+3)}, -{V(raw+2)}, {V(raw+2)}, {V(raw+3)}"))
        s.append(lambda: a.I(f"v_max_f32 {V(raw+3)}, 0, {V(raw+3)}"))
        s.append(lambda: a.I(f"v_add_f32 {V(raw+3)}, 0x{f2u(1e-5):x}, {V(raw+3)}"))
        s.append(lambda: a.I(f"v_rsq_f32 {V(raw)}, {V(raw+3)}"))
        s.append(lambda: a.I(f"v_mov_b32 {V(raw+1)}, {V(raw+2)}"))
        s.append(lambda: a.I(f"v_mul_f32 {V(raw+2)}, {V(raw+3)}, {V(raw)}"))
        return s

    def ring_gemm(self, NT, acc, wbuf, w_is_a, sAbase, sWsrc, nsteps, pre_steps, a_first, a_rate, dma_plan, barriers,
                  fill, entry_label=None, stats_off=0, stats_dst=None):
        a = self.a
        NKS = 40
        if entry_label:
            a.flush_hazards()
            a.label(entry_label)
        n0 = a.vm_issued
        st_tok = self.stats_loads(stats_off, stats_dst)
        aregs = [('a', 4 * k) for k in range(NKS)]
        al = self.seq_loads(sAbase, sA, aregs, "sc1")
        atok = {}
        na = 0
        for _ in range(a_first):
            atok[na] = al[na]()
            na += 1
        a.I(f"s_waitcnt vmcnt({a.vm_issued - n0})")
        a.vm_done = max(a.vm_done, n0)
        a.I("s_barrier")
        rtok = {}

        def rd(ks, T):
            f = ks * NT + T
            v, off = self.ring_addr(f % RING)
            rtok[(ks, T)] = a.I(f"ds_read_b128 {V(wbuf + ((ks % 3) * NT + T) * 4, 4)}, {V(v)} offset:{off}")
        for ks in (0, 1):
            for T in range(NT):
                rd(ks, T)
        steps = {}
        nissued = {}
        first_read_ks = lambda j: max(0, (16 * j) // NT - 2)
        done_ks = lambda j: (16 * j + 15) // NT
        issue_at = dict(dma_plan)
        for j in range(pre_steps, nsteps):
            assert j in issue_at, j
            if j >= RING // 16:
                jj = j - RING // 16
                assert any(done_ks(jj) <= b <= issue_at[j] for b in barriers), ("WAR", j)
            assert any(issue_at[j] < b <= first_read_ks(j) for b in barriers), ("RAW", j)
        acc_a = 0.0
        pend = []
        fill = {k: list(v) for k, v in fill.items()}
        fill_st = self.stats_reduce(stats_dst, st_tok)
        for ks in range(NKS):
            toks = [atok[ks]] + [rtok[(ks, T)] for T in range(NT)]
            if ks in barriers:
                nxt = min([b for b in barriers if b > ks], default=1000)
                for j in issue_at:
                    if first_read_ks(j) < nxt:
                        assert nissued.get(j, 0) == 4, ("RAW incomplete", j, ks)
                        toks.append(steps[j])
            a.wait(*toks)
            if ks in barriers:
                a.I("s_barrier")
            q = []
            acc_a += a_rate
            while acc_a >= 1.0 and na < NKS:
                q.append(('A', na))
                na += 1
                acc_a -= 1.0
            for j in sorted(issue_at):
                if issue_at[j] == ks:
                    for i, c in enumerate(self.dma_step(sWsrc, j)):
                        pend.append(('D', j, c))
            take = min(len(pend), self.cfg.get('dma_per_ks', 2))
            q += pend[:take]
            pend = pend[take:]
            q += [('F', c) for c in fill.get(ks, [])]
            if ks >= 6:
                q += [('F', c) for c in fill_st[:3]]
                fill_st = fill_st[3:]
            per = -(-len(q) // NT)
            for T in range(NT):
                w = V(wbuf + ((ks % 3) * NT + T) * 4, 4)
                x = A(4 * ks, 4)
                d = V(acc + 16 * T, 16)
                c = d if ks else "0"
                if w_is_a:
                    a.I(f"v_mfma_f32_32x32x16_bf16 {d}, {w}, {x}, {c}")
                else:
                    a.I(f"v_mfma_f32_32x32x16_bf16 {d}, {x}, {w}, {c}")
                if ks + 2 < NKS:
                    rd(ks + 2, T)
                for it in q[:per]:
                    if it[0] == 'A':
                        atok[it[1]] = al[it[1]]()
                    elif it[0] == 'D':
                        steps[it[1]] = it[2]()
                        nissued[it[1]] = nissued.get(it[1], 0) + 1
                    else:
                        it[1]()
                q = q[per:]
        assert not pend and not fill_st and na == NKS

    def ksplit_gemm(self, NK, wregs, aring, sAb, a_first, bg, bg_start):
        a = self.a
        acc = W0
        recv = W0 + 80
        tot = 4 * NK
        loads = []
        for r in range(4):
            regs = [aring[(r * NK + k) % len(aring)] for k in range(NK)]
            loads += self.seq_loads(sAb + r, sA, regs, "sc1")
        atok = {}
        na = 0
        for _ in range(a_first):
            atok[na] = loads[na]()
            na += 1
        bg = list(bg)
        rtoks = []
        for r in range(4):
            for ks in range(NK):
                i = r * NK + ks
                a.wait(atok[i])
                q = []
                if na < tot:
                    assert na - len(aring) < i
                    q.append(('A', na))
                    na += 1
                if i >= bg_start and bg:
                    q.append(('F', bg.pop(0)))
                if r > 0 and ks == 0:
                    q.append(('F', lambda r=r: a.I(f"v_add_u32 {V(vTMP)}, {S(sEX + r - 1)}, {V(vL16)}")))
                if r > 0 and ks == 1:
                    for T in range(5):
                        q.append(('F', lambda r=r, T=T: a.I(
                            f"ds_write_b128 {V(vTMP)}, {V(acc + 20 * (r - 1) + 4 * T, 4)} offset:{T*1024}")))
                if r == 3 and ks == 2:
                    def bar():
                        a.drain_lg()
                        a.I("s_barrier")
                        a.I(f"s_mul_i32 {S(sT0)}, {S(sW)}, 15360")
                        a.I(f"s_add_u32 {S(sT0)}, {S(sT0)}, {L_EX}")
                        a.I(f"v_add_u32 {V(vTMP)}, {S(sT0)}, {V(vL16)}")
                    q.append(('F', bar))
                if r == 3 and ks in (3, 4):
                    lo, hi = (0, 8) if ks == 3 else (8, 15)
                    for z in range(lo, hi):
                        q.append(('F', lambda z=z: rtoks.append(
                            a.I(f"ds_read_b128 {V(recv + 4 * z, 4)}, {V(vTMP)} offset:{z*1024}"))))
                per = -(-len(q) // 5)
                x = R(aring[i % len(aring)], 4)
                for T in range(5):
                    d = V(acc + 20 * r + 4 * T, 4)
                    c = d if ks else "0"
                    a.I(f"v_mfma_f32_16x16x32_bf16 {d}, {R(wregs[ks * 5 + T], 4)}, {x}, {c}")
                    for it in q[:per]:
                        if it[0] == 'A':
                            atok[it[1]] = loads[it[1]]()
                        else:
                            it[1]()
                    q = q[per:]
        for c in bg:
            c()
        a.wait(rtoks[9])
        for z in range(10):
            a.I(f"v_pk_add_f32 {V(recv+2*z,2)}, {V(recv+2*z,2)}, {V(recv+20+2*z,2)}")
        a.wait(rtoks[14])
        for z in range(10):
            a.I(f"v_pk_add_f32 {V(recv+2*z,2)}, {V(recv+2*z,2)}, {V(recv+40+2*z,2)}")

    def resid_epilogue(self, last_capable):
        a = self.a
        acc, recv, t = W0 + 60, W0 + 80, W0 + 100
        for z in range(10):
            a.I(f"v_lshlrev_b32 {V(t+2*z)}, 16, {V(vRES+z)}")
            a.I(f"v_and_b32 {V(t+2*z+1)}, 0xffff0000, {V(vRES+z)}")
        for z in range(10):
            a.I(f"v_pk_add_f32 {V(recv+2*z,2)}, {V(recv+2*z,2)}, {V(t+2*z,2)}")
        for z in range(10):
            a.I(f"v_pk_add_f32 {V(recv+2*z,2)}, {V(recv+2*z,2)}, {V(acc+2*z,2)}")
        for z in range(10):
            a.I(f"v_cvt_pk_bf16_f32 {V(vRES+z)}, {V(recv+2*z)}, {V(recv+2*z+1)}")
        Lout = self.lab("out")
        if last_capable:
            a.I(f"s_cmp_lg_u32 {S(sLAY)}, 0")
            a.I(f"s_cbranch_scc1 {Lout}")
        st = a.save()

        def stores(mod):
            a.I(f"buffer_store_dwordx4 {V(vRES,4)}, {V(vXD4)}, {S(WS,4)}, {S(sXD)} offen {mod}")
            a.I(f"buffer_store_dwordx4 {V(vRES+4,4)}, {V(vXD4)}, {S(WS,4)}, {S(sXD)} offen offset:2048 {mod}")
            a.I(f"buffer_store_dwordx2 {V(vRES+8,2)}, {V(vXD2)}, {S(WS,4)}, {S(sXD)} offen {mod}")
        a.I(f"s_add_u32 {S(sXD)}, {S(sXD)}, {XP_SZ}")
        a.dual(S(sFAST), stores, self.lab("xs"))
        a.I(f"v_mov_b32 {V(t)}, 0")
        a.I(f"v_mov_b32 {V(t+1)}, 0")
        for z in range(10):
            a.I(f"v_dot2c_f32_bf16 {V(t)}, {V(vRES+z)}, {V(vONES)}")
            a.I(f"v_dot2c_f32_bf16 {V(t+1)}, {V(vRES+z)}, {V(vRES+z)}")
        for ins in ("v_permlane16_swap_b32", "v_permlane32_swap_b32"):
            a.I(f"v_mov_b32 {V(t+2)}, {V(t)}")
            a.I(f"v_mov_b32 {V(t+3)}, {V(t+1)}")
            a.I(f"{ins} {V(t)}, {V(t+2)}")
            a.I(f"{ins} {V(t+1)}, {V(t+3)}")
            a.I(f"v_pk_add_f32 {V(t,2)}, {V(t,2)}, {V(t+2,2)}")
        a.I(f"s_add_u32 {S(sSTW)}, {S(sSTW)}, 0x20000")
        a.I(f"v_lshlrev_b32 {V(t+2)}, 3, {V(vLANE)}")
        a.I("s_mov_b64 exec, 0xffff")
        a.dual(S(sFAST), lambda mod: a.I(f"buffer_store_dwordx2 {V(t,2)}, {V(t+2)}, {S(WS,4)}, {S(sSTW)} offen {mod}"), self.lab("ss"))
        a.I("s_mov_b64 exec, -1")
        self.publish_row()
        return Lout, st

    def gen(self):
        a, name, cfg = self.a, self.name, self.cfg
        a.raw(f".globl {name}\n.p2align 8\n.type {name},@function\n{name}:")
        a.I("s_cmp_ge_u32 s2, 256")
        a.I(f"s_cbranch_scc1 {name}_end")
        a.I("s_load_dwordx2 s[48:49], s[0:1], 56")
        a.I("s_load_dwordx2 s[50:51], s[0:1], 72")
        ids(a, sG, sM, sT0 + 4)
        a.I(f"v_lshrrev_b32 {V(vTMP)}, 6, v0")
        a.I(f"v_lshlrev_b32 {V(vT16)}, 4, v0")
        a.I(f"v_readfirstlane_b32 {S(sW)}, {V(vTMP)}")
        a.I(f"v_mul_u32_u24 {V(vTMP)}, 205, v0")
        a.I(f"v_lshrrev_b32 {V(vTMP)}, 10, {V(vTMP)}")
        a.I(f"v_mul_u32_u24 {V(vTMP+1)}, 5, {V(vTMP)}")
        a.I(f"v_sub_u32 {V(vTMP+1)}, v0, {V(vTMP+1)}")
        a.I(f"v_lshlrev_b32 {V(vTMP+1)}, 3, {V(vTMP+1)}")
        a.I(f"v_lshl_add_u32 {V(vKAW)}, {V(vTMP)}, 6, {V(vTMP+1)}")
        a.I(f"v_add_u32 {V(vKAW)}, {L_KVA}, {V(vKAW)}")
        a.I(f"v_and_b32 {V(vLANE)}, 63, v0")
        a.I(f"v_lshlrev_b32 {V(vL16)}, 4, {V(vLANE)}")
        a.I(f"s_lshr_b32 {S(sHF)}, {S(sM)}, 3")
        a.I(f"s_and_b32 {S(sSL)}, {S(sM)}, 7")
        a.I(f"s_lshl_b32 {S(sWV16)}, {S(sW)}, 12")

        def lin(dst, terms, const):
            first = True
            for r, mul in terms:
                if first:
                    a.I(f"s_mul_i32 {S(dst)}, {S(r)}, {mul}")
                    first = False
                else:
                    a.I(f"s_mul_i32 {S(sT3+4)}, {S(r)}, {mul}")
                    a.I(f"s_add_u32 {S(dst)}, {S(dst)}, {S(sT3+4)}")
            a.I(f"s_add_u32 {S(dst)}, {S(dst)}, {const}")
        lin(sW1, [(sM, 163840), (sW, 4096)], W1P)
        lin(sXA, [(sG, 163840), (sW, 40960)], XP)
        lin(sSTR, [(sG, 8192), (sW, 256)], ST)
        a.I("s_waitcnt lgkmcnt(0)")
        srd(a, OUT, 48, 2048 * 1280)
        srd(a, WS, 50, WS_BYTES)
        srd(a, WSZ, 50, WS_BYTES)
        for j in range(cfg['w1_pre']):
            for c in self.dma_step(sW1, j):
                c()
        lin(sW3, [(sM, 245760), (sW, 4096)], W3P)
        lin(sW2, [(sSL, 102400), (sW, 25600)], W2P)
        lin(sW4, [(sSL, 245760), (sW, 61440)], W4P)
        a.I(f"s_lshr_b32 {S(sT0)}, {S(sW)}, 1")
        a.I(f"s_and_b32 {S(sT1)}, {S(sW)}, 1")
        lin(sXD, [(sG, 163840), (sHF, 81920), (sT0, 40960), (sT1, 256), (sSL, 5120)], XP)
        lin(sSTW, [(sG, 8192), (sSL, 1024), (sHF, 512), (sW, 128)], ST)
        lin(sOW, [(sG, 163840), (sW, 40960), (sM, 1280)], OP)
        lin(sHW, [(sG, 393216), (sW, 98304), (sM, 3072)], HP)
        for r in range(4):
            a.I(f"s_add_u32 {S(sT0)}, {S(sW)}, {r+1}")
            a.I(f"s_and_b32 {S(sT0)}, {S(sT0)}, 3")
            lin(sOA + r, [(sG, 163840), (sHF, 81920), (sT0, 20480), (sW, 5120)], OP)
            lin(sHA + r, [(sG, 393216), (sHF, 196608), (sT0, 49152), (sW, 12288)], HP)
            if r < 3:
                lin(sEX + r, [(sT0, 15360)], L_EX + r * 5120)
        lin(sKVW, [(sM, 65536), (sG, 4096)], KVP)
        lin(sKVR, [(sM, 65536)], KVP)
        lin(sRFW, [(sG, 128), (sM, 4)], F_ROW)
        lin(sRFP, [(sG, 128)], F_ROW)
        lin(sCFW, [(sM, 2048), (sG, 4)], F_COL)
        lin(sCFP, [(sM, 2048), (sG, 128)], F_COL)
        a.I(f"s_lshl_b32 {S(sSTAMP)}, s2, 10")
        a.I(f"s_lshl_b32 {S(sT0)}, {S(sW)}, 8")
        a.I(f"s_add_u32 {S(sSTAMP)}, {S(sSTAMP)}, {S(sT0)}")
        a.I(f"s_add_u32 {S(sSTAMP)}, {S(sSTAMP)}, {STAMP}")
        a.I(f"s_mov_b32 {S(sLAY)}, 0")
        a.I(f"s_mov_b32 {S(sSEQ)}, 0")
        a.I(f"s_mov_b32 {S(sFAST)}, 0")
        c0 = -2.0 * 1.4426950408889634 * 0.7978845608028654
        for r, val in ((sLOG2E, 1.4426950408889634), (sEPS6, 1e-6), (sC0, c0), (sC1, c0 * 0.044715)):
            a.I(f"s_mov_b32 {S(r)}, 0x{f2u(val):x}")
            a.I(f"s_mov_b32 {S(r+1)}, 0x{f2u(val):x}")
        a.I(f"s_mov_b32 {S(sMLO16)}, 0xffff")
        a.I(f"s_mov_b32 {S(sMLO16+1)}, 0xffff")
        a.I(f"s_mov_b32 {S(sM31)}, 0x80000000")
        a.I(f"s_mov_b32 {S(sM31+1)}, 0x80000000")
        a.I(f"s_getreg_b32 {S(sT2)}, hwreg(HW_REG_XCC_ID, 0, 4)")
        a.I(f"s_add_u32 {S(sT2)}, {S(sT2)}, 1")
        a.I(f"v_mov_b32 {V(vTMP)}, {S(sT2)}")
        a.I(f"v_mov_b32 {V(vTMP+1)}, 0")
        a.I(f"s_add_u32 {S(sT0)}, {S(sRFW)}, {F_XCC - F_ROW}")
        a.I("s_mov_b64 exec, 1")
        a.I(f"buffer_store_dword {V(vTMP)}, {V(vTMP+1)}, {S(WS,4)}, {S(sT0)} offen sc1")
        a.I("s_mov_b64 exec, -1")
        t0, t1, t2, t3 = W0, W0 + 1, W0 + 2, W0 + 3
        j32, hh, t16, g4 = W0 + 4, W0 + 5, W0 + 6, W0 + 7
        a.I(f"v_add_u32 {V(vR1)}, 0x10000, {V(vL16)}")
        a.I(f"v_add_u32 {V(vR2)}, 0x20000, {V(vL16)}")
        a.I(f"v_and_b32 {V(j32)}, 31, {V(vLANE)}")
        a.I(f"v_lshrrev_b32 {V(hh)}, 5, {V(vLANE)}")
        a.I(f"v_and_b32 {V(t16)}, 15, {V(vLANE)}")
        a.I(f"v_lshrrev_b32 {V(g4)}, 4, {V(vLANE)}")
        a.I(f"v_lshlrev_b32 {V(t0)}, 4, {V(t16)}")
        a.I(f"v_lshl_add_u32 {V(vXD4)}, {V(g4)}, 9, {V(t0)}")
        a.I(f"v_lshl_add_u32 {V(vXD2)}, {V(hh)}, 9, {V(t0)}")
        a.I(f"v_and_b32 {V(t1)}, 1, {V(g4)}")
        a.I(f"v_lshl_add_u32 {V(vXD2)}, {V(t1)}, 3, {V(vXD2)}")
        a.I(f"v_add_u32 {V(vXD2)}, 4096, {V(vXD2)}")
        a.I(f"v_lshlrev_b32 {V(vSTL)}, 3, {V(j32)}")
        a.I(f"v_lshl_add_u32 {V(vSTL)}, {V(hh)}, 12, {V(vSTL)}")
        a.I(f"v_lshl_add_u32 {V(t2)}, {V(hh)}, 8, {V(t0)}")
        a.I(f"v_mul_u32_u24 {V(t3)}, 49152, {V(t1)}")
        a.I(f"v_add_u32 {V(vHST)}, {V(t3)}, {V(t2)}")
        a.I(f"v_mul_u32_u24 {V(t3)}, 20480, {V(t1)}")
        a.I(f"v_add_u32 {V(vOST)}, {V(t3)}, {V(t2)}")
        rt = a.I(f"buffer_load_dwordx4 {V(vRES,4)}, {V(vXD4)}, {S(WS,4)}, {S(sXD)} offen")
        a.I(f"buffer_load_dwordx4 {V(vRES+4,4)}, {V(vXD4)}, {S(WS,4)}, {S(sXD)} offen offset:2048")
        a.I(f"buffer_load_dwordx2 {V(vRES+8,2)}, {V(vXD2)}, {S(WS,4)}, {S(sXD)} offen")
        c1 = W0 + 12
        a.I(f"v_lshlrev_b32 {V(t2)}, 4, {V(j32)}")
        a.I(f"v_lshl_add_u32 {V(t2)}, {V(hh)}, 11, {V(t2)}")
        lin(sT0, [(sM, 4096)], CS1)
        for q in range(4):
            a.I(f"buffer_load_dwordx4 {V(c1+4*q,4)}, {V(t2)}, {S(WS,4)}, {S(sT0)} offen offset:{q*512}")
        c3 = W0 + 28
        a.I(f"v_lshrrev_b32 {V(t2)}, 2, {V(vT16)}")
        lin(sT0, [(sM, 6144)], CS3)
        a.I(f"s_add_u32 {S(sT1)}, {S(sT0)}, 3072")
        for q in range(8):
            a.I(f"buffer_load_dword {V(c3+q)}, {V(t2)}, {S(WS,4)}, {S(sT0 if q < 4 else sT1)} offen offset:{(q%4)*768}")
        a.I(f"s_mul_i32 {S(sT0)}, {S(sW)}, 3360")
        a.I(f"s_add_u32 {S(sT0)}, {S(sT0)}, {L_KVW}")
        a.I(f"v_lshlrev_b32 {V(t3)}, 4, {V(hh)}")
        a.I(f"v_add_u32 {V(t3)}, {S(sT0)}, {V(t3)}")
        a.I(f"v_cmp_eq_u32 vcc, 31, {V(j32)}")
        a.I(f"v_cndmask_b32 {V(t0)}, {V(j32)}, 20, vcc")
        a.I(f"v_mul_u32_u24 {V(t0)}, 80, {V(t0)}")
        a.I(f"v_add_u32 {V(vB0)}, {V(t0)}, {V(t3)}")
        a.I(f"v_cndmask_b32 {V(t0)}, {V(j32)}, 40, vcc")
        a.I(f"v_mul_u32_u24 {V(t0)}, 80, {V(t0)}")
        a.I(f"v_add_u32 {V(vB1)}, {V(t0)}, {V(t3)}")
        a.I(f"v_add_u32 {V(vB1)}, {1680 - 1600 - 16}, {V(vB1)}")
        a.I(f"v_mul_u32_u24 {V(t0)}, 80, {V(j32)}")
        a.I(f"v_add_u32 {V(vB2)}, {V(t0)}, {V(t3)}")
        a.I(f"v_add_u32 {V(vB2)}, {1680 - 400 - 16}, {V(vB2)}")
        a.I(f"v_lshrrev_b32 {V(t0)}, 3, {V(j32)}")
        a.I(f"v_and_b32 {V(t1)}, 3, {V(j32)}")
        a.I(f"v_and_b32 {V(t3)}, 4, {V(j32)}")
        a.I(f"v_lshl_add_u32 {V(vKA0)}, {V(t3)}, 1, {V(t1)}")
        a.I(f"v_lshl_add_u32 {V(vKA0)}, {V(t0)}, 2, {V(vKA0)}")
        a.I(f"v_add_u32 {V(vKA1)}, 4, {V(vKA0)}")
        a.I(f"v_add_u32 {V(t3)}, 16, {V(t1)}")
        a.I(f"v_cmp_eq_u32 vcc, 2, {V(t0)}")
        a.I(f"v_cndmask_b32 {V(vKA0)}, {V(vKA0)}, {V(t3)}, vcc")
        a.I(f"v_cndmask_b32 {V(vKA1)}, {V(vKA1)}, {V(t1)}, vcc")
        a.I(f"v_cmp_eq_u32 vcc, 3, {V(t0)}")
        a.I(f"v_cndmask_b32 {V(vKA0)}, {V(vKA0)}, 20, vcc")
        a.I(f"v_cndmask_b32 {V(vKA1)}, {V(vKA1)}, 20, vcc")
        a.I(f"v_lshlrev_b32 {V(t3)}, 4, {V(hh)}")
        a.I(f"v_lshl_add_u32 {V(vKA0)}, {V(vKA0)}, 6, {V(t3)}")
        a.I(f"v_lshl_add_u32 {V(vKA1)}, {V(vKA1)}, 6, {V(t3)}")
        a.I(f"v_add_u32 {V(vKA0)}, {L_KVA}, {V(vKA0)}")
        a.I(f"v_add_u32 {V(vKA1)}, {L_KVA + 21*64}, {V(vKA1)}")
        a.I(f"s_mul_i32 {S(sT0)}, {S(sW)}, 2560")
        a.I(f"s_add_u32 {S(sT0)}, {S(sT0)}, {L_PQT}")
        a.I(f"v_lshlrev_b32 {V(t0)}, 3, {V(hh)}")
        a.I(f"v_lshl_add_u32 {V(vPQW)}, {V(j32)}, 6, {V(t0)}")
        a.I(f"v_add_u32 {V(vPQW)}, {S(sT0)}, {V(vPQW)}")
        a.I(f"v_lshrrev_b32 {V(t0)}, 2, {V(t16)}")
        a.I(f"v_and_b32 {V(t1)}, 3, {V(t16)}")
        a.I(f"v_lshlrev_b32 {V(t1)}, 3, {V(t1)}")
        a.I(f"v_lshl_add_u32 {V(vPQR1)}, {V(t0)}, 6, {V(t1)}")
        a.I(f"v_and_b32 {V(t1)}, 16, {V(vLANE)}")
        a.I(f"v_lshl_add_u32 {V(vPQR1)}, {V(t1)}, 1, {V(vPQR1)}")
        a.I(f"v_add_u32 {V(vPQR1)}, {S(sT0)}, {V(vPQR1)}")
        a.I(f"v_lshl_add_u32 {V(vPQR0)}, {V(hh)}, 9, {V(vPQR1)}")
        a.I(f"s_lshl_b32 {S(sT0)}, {S(sW)}, 8")
        a.I(f"s_add_u32 {S(sT0)}, {S(sT0)}, {L_STW}")
        a.I(f"v_lshlrev_b32 {V(vSTWW)}, 2, {V(j32)}")
        a.I(f"v_lshl_add_u32 {V(vSTWW)}, {V(hh)}, 7, {V(vSTWW)}")
        a.I(f"v_add_u32 {V(vSTWW)}, {S(sT0)}, {V(vSTWW)}")
        a.I(f"v_add_u32 {V(vSTWR)}, {S(sT0)}, {V(t3)}")
        a.I(f"v_add_u32 {V(vCS3R)}, {L_CS3}, {V(t3)}")
        a.I(f"v_lshlrev_b32 {V(vPOLL)}, 2, {V(t16)}")
        a.I(f"v_mov_b32 {V(vONES)}, 0x3f803f80")
        a.I(f"v_mov_b32 {V(t3)}, 0x{OOB:x}")
        a.I(f"v_lshrrev_b32 {V(t0)}, 1, {V(vLANE)}")
        a.I(f"v_and_b32 {V(t1)}, 1, {V(vLANE)}")
        a.I(f"v_lshlrev_b32 {V(t1)}, 7, {V(t1)}")
        a.I(f"v_lshl_add_u32 {V(vPTX)}, {V(t0)}, 9, {V(t1)}")
        a.I(f"v_cmp_gt_u32 vcc, 20, {V(vLANE)}")
        a.I(f"v_cndmask_b32 {V(vPTX)}, {V(t3)}, {V(vPTX)}, vcc")
        a.I(f"v_lshlrev_b32 {V(t0)}, 7, {V(j32)}")
        a.I(f"v_mul_u32_u24 {V(t1)}, 20480, {V(hh)}")
        a.I(f"v_add_u32 {V(vPTO)}, {V(t0)}, {V(t1)}")
        a.I(f"v_cmp_gt_u32 vcc, 10, {V(j32)}")
        a.I(f"v_cndmask_b32 {V(vPTO)}, {V(t3)}, {V(vPTO)}, vcc")
        a.I(f"v_mul_u32_u24 {V(t1)}, 49152, {V(hh)}")
        a.I(f"v_add_u32 {V(vPTH)}, {V(t0)}, {V(t1)}")
        a.I(f"v_cmp_gt_u32 vcc, 24, {V(j32)}")
        a.I(f"v_cndmask_b32 {V(vPTH)}, {V(t3)}, {V(vPTH)}, vcc")
        for q in range(4):
            a.I(f"v_mov_b32 {V(W0+40+q)}, 0")
        a.I(f"v_add_u32 {V(t0)}, {L_KVA}, {V(vT16)}")
        a.I(f"v_cmp_gt_u32 vcc, 3328, {V(vT16)}")
        a.I("s_mov_b64 exec, vcc")
        a.I(f"ds_write_b128 {V(t0)}, {V(W0+40,4)}")
        a.I("s_mov_b64 exec, -1")
        a.drain_vm()
        for q in (1, 2, 3):
            a.I(f"v_pk_add_f32 {V(c1,2)}, {V(c1,2)}, {V(c1+4*q,2)}")
            a.I(f"v_pk_add_f32 {V(c1+2,2)}, {V(c1+2,2)}, {V(c1+4*q+2,2)}")
        for q in range(4):
            a.I(f"v_mov_b32 {V(vCS1+q)}, {V(c1+q)}")
        for q in range(4):
            a.I(f"v_permlane32_swap_b32 {V(vCS1+q)}, {V(c1+q)}")
        for q in range(4):
            a.I(f"v_add_f32 {V(vCS1+q)}, {V(vCS1+q)}, {V(c1+q)}")
        for q in range(1, 8):
            a.I(f"v_add_f32 {V(c3)}, {V(c3)}, {V(c3+q)}")
        a.I(f"v_add_u32 {V(t2)}, {L_CS3}, {V(t2)}")
        a.I(f"v_cmp_gt_u32 vcc, 3072, {V(vT16)}")
        a.I("s_mov_b64 exec, vcc")
        a.I(f"ds_write_b32 {V(t2)}, {V(c3)}")
        a.I("s_mov_b64 exec, -1")
        a.drain_lg()
        self.stamp(0)
        a.I(f"s_branch {name}_p1")

        a.flush_hazards()
        a.label(f"{name}_layer")
        self.poll(sRFP, sSEQ)
        self.p1()
        self.p2()
        self.p3()
        self.p4()
        a.label(f"{name}_end")
        a.I("s_endpgm")

    def pretouch(self, voff, sbase, add):
        a = self.a

        def f():
            if add:
                a.I(f"s_add_u32 {S(sT1)}, {S(sbase)}, {add}")
            a.I(f"buffer_load_dword {V(vTMP+2)}, {V(voff)}, {S(WS,4)}, {S(sT1 if add else sbase)} offen sc1")
        return f

    def p1(self):
        a, cfg = self.a, self.cfg
        acc, wb = W0, W0 + 64
        raw = wb + 48
        av, nm = raw + 8, raw + 24
        tmp = nm + 16
        self.w2regs = [('a', 160 + 4 * i) for i in range(24)] + [('v', 252)]
        fill = {}
        fill.setdefault(13, []).append(lambda: a.I(f"v_cndmask_b32 {V(raw+3)}, {V(raw)}, {V(raw+1)}, {S(sT2,2)}"))
        fill[12] = [lambda: a.I(f"s_mov_b32 {S(sT2)}, 0"), lambda: a.I(f"s_mov_b32 {S(sT3)}, -1")]
        fill[13].append(lambda: a.I(f"ds_write_b32 {V(vSTWW)}, {V(raw+3)}"))
        for q in range(4):
            fill.setdefault(15 + q, []).append(lambda q=q: a.I(f"ds_read_b128 {V(av+4*q,4)}, {V(vSTWR)} offset:{32*q}"))
            fill.setdefault(15 + q, []).append(lambda q=q: a.I(f"ds_read_b128 {V(nm+4*q,4)}, {V(vSTWR)} offset:{128+32*q}"))
        k0 = cfg['p1_bg']
        fill.setdefault(k0, []).append(self.pretouch(vPTO, sOW, 0))
        w2l = self.seq_loads(sW2, sB, self.w2regs)
        k = k0 + 1
        while w2l:
            fill.setdefault(k, []).extend(w2l[:2])
            w2l = w2l[2:]
            k += 1
        assert k <= 40
        self.ring_gemm(4, acc, wb, False, sXA, sW1, 10, cfg['w1_pre'], cfg['p1_afirst'], cfg['p1_arate'],
                       cfg['p1_dma'], cfg['p1_bar'], fill, entry_label=f"{self.name}_p1", stats_off=0, stats_dst=raw)
        self.stamp(1)
        a.drain_lg()
        pk = wb

        def ln(T):
            sel = "op_sel:[0,1,0] op_sel_hi:[1,1,1]" if T & 1 else "op_sel:[0,0,0] op_sel_hi:[1,0,1]"
            cs = V(vCS1 + (T & 2), 2)
            for r in range(0, 16, 2):
                x = V(acc + 16 * T + r, 2)
                a.I(f"v_pk_fma_f32 {x}, {V(nm+r,2)}, {cs}, {x} {sel}")
            for r in range(0, 16, 2):
                x = V(acc + 16 * T + r, 2)
                a.I(f"v_pk_mul_f32 {x}, {x}, {V(av+r,2)}")

        def phi(T, dst):
            x0 = acc + 16 * T
            for r in range(16):
                a.I(f"v_min_f32 {V(tmp+r)}, 0, {V(x0+r)}")
            for r in range(0, 16, 2):
                a.I(f"v_pk_mul_f32 {V(tmp+r,2)}, {V(tmp+r,2)}, {S(sLOG2E,2)}")
            for r in range(16):
                a.I(f"v_exp_f32 {V(tmp+r)}, {V(tmp+r)}")
                a.I(f"v_max_f32 {V(dst+r)}, 0, {V(x0+r)}")
            for r in range(0, 16, 2):
                a.I(f"v_pk_add_f32 {V(dst+r,2)}, {V(dst+r,2)}, {V(tmp+r,2)}")
            for r in range(0, 16, 2):
                a.I(f"v_pk_add_f32 {V(dst+r,2)}, {V(dst+r,2)}, {S(sEPS6,2)}")

        def pack(T, src):
            for r in range(8):
                a.I(f"v_cvt_pk_bf16_f32 {V(pk+8*T+r)}, {V(src+2*r)}, {V(src+2*r+1)}")
        ln(0)
        phi(0, acc)
        pack(0, acc)
        ln(2)
        pack(2, acc + 32)
        for r in range(8):
            a.I(f"v_cndmask_b32 {V(pk+16+r)}, {V(pk+16+r)}, {V(vONES)}, {S(sM31,2)}")
        D02, D01, D12, D11 = acc, acc + 32, tmp + 32, acc + 16

        def kvm(D, Ta, Tb):
            a.I(f"v_mfma_f32_32x32x16_bf16 {V(D,16)}, {V(pk+8*Ta,4)}, {V(pk+8*Tb,4)}, 0")
            a.I(f"v_mfma_f32_32x32x16_bf16 {V(D,16)}, {V(pk+8*Ta+4,4)}, {V(pk+8*Tb+4,4)}, {V(D,16)}")
        kvm(D02, 0, 2)
        ln(1)
        phi(1, tmp + 16)
        for r in range(16):
            a.I(f"v_cndmask_b32 {V(acc+16+r)}, {V(acc+16+r)}, {V(tmp+16+r)}, {S(sMLO16,2)}")
        pack(1, acc + 16)
        kvm(D01, 0, 1)
        kvm(D12, 1, 2)
        kvm(D11, 1, 1)
        assert tmp + 48 <= 252
        M0, M1, M2 = 0x800FFFFF, 0xFFF00000, 0x01FF0000
        a.exec_mask(M0, M0)
        a.I(f"ds_write_b128 {V(vB0)}, {V(D02,4)}")
        a.I(f"ds_write_b128 {V(vB0)}, {V(D02+4,4)} offset:32")
        a.I("s_mov_b32 exec_hi, 0")
        a.I(f"ds_write_b128 {V(vB0)}, {V(D02+8,4)} offset:64")
        a.exec_mask(0, M1)
        a.I(f"ds_write_b128 {V(vB1)}, {V(D02+8,4)}")
        a.I(f"s_mov_b32 exec_lo, 0x{M1:x}")
        a.I(f"ds_write_b128 {V(vB1)}, {V(D02+12,4)} offset:32")
        a.I(f"ds_write_b128 {V(vB1)}, {V(D12,4)} offset:64")
        a.exec_mask(0, M2)
        a.I(f"ds_write_b128 {V(vB2)}, {V(D01+8,4)}")
        a.I(f"s_mov_b32 exec_lo, 0x{M2:x}")
        a.I(f"ds_write_b128 {V(vB2)}, {V(D01+12,4)} offset:32")
        a.I(f"ds_write_b128 {V(vB2)}, {V(D11,4)} offset:64")
        a.I("s_mov_b64 exec, -1")
        a.drain_lg()
        a.I("s_barrier")
        a.I(f"v_add_u32 {V(vTMP)}, {L_KVW}, {V(vT16)}")
        for q in range(4):
            a.I(f"ds_read_b128 {V(acc+4*q,4)}, {V(vTMP)} offset:{q*3360}")
        a.drain_lg()
        for q in (1, 2, 3):
            a.I(f"v_pk_add_f32 {V(acc,2)}, {V(acc,2)}, {V(acc+4*q,2)}")
            a.I(f"v_pk_add_f32 {V(acc+2,2)}, {V(acc+2,2)}, {V(acc+4*q+2,2)}")
        a.I(f"buffer_store_dwordx4 {V(acc,4)}, {V(vT16)}, {S(WS,4)}, {S(sKVW)} offen sc1")
        ln(3)
        a.drain_vm()
        a.I("s_barrier")
        L = self.lab("nf")
        a.I(f"s_cmp_lg_u32 {S(sW)}, 0")
        a.I(f"s_cbranch_scc1 {L}")
        a.I(f"s_add_u32 {S(sT0)}, {S(sLAY)}, 1")
        a.I(f"v_mov_b32 {V(vTMP)}, {S(sT0)}")
        a.I(f"v_lshlrev_b32 {V(vTMP+1)}, 7, {V(vLANE)}")
        a.I("s_mov_b64 exec, 0xffff")
        a.I(f"buffer_store_dword {V(vTMP)}, {V(vTMP+1)}, {S(WS,4)}, {S(sCFW)} offen sc1", count=False)
        a.I("s_mov_b64 exec, -1")
        a.flush_hazards()
        a.label(L)
        self.stamp(2)
        for j in cfg['w3_at_kvwait']:
            for c in self.dma_step(sW3, j):
                c()
        phi(3, acc + 48)
        pack(3, acc + 48)
        for q in range(4):
            a.I(f"ds_write_b64 {V(vPQW)}, {V(pk+24+2*q,2)} offset:{16*q}")
        a.exec_mask(0xFF00, 0xFF00)
        for q in range(4):
            a.I(f"ds_write_b64 {V(vPQW)}, {V(pk+8+2*q,2)} offset:{1536+16*q}")
        a.I("s_mov_b64 exec, -1")
        pq = acc
        a.drain_lg()
        for h in range(2):
            a.I(f"ds_read_b64_tr_b16 {V(pq+8*h,2)}, {V(vPQR0)} offset:{h*1280}")
            a.I(f"ds_read_b64_tr_b16 {V(pq+8*h+2,2)}, {V(vPQR0)} offset:{h*1280+256}")
            a.I(f"ds_read_b64_tr_b16 {V(pq+8*h+4,2)}, {V(vPQR1)} offset:{h*1280+1024}")
            a.I(f"v_mov_b32 {V(pq+8*h+6)}, 0")
            a.I(f"v_mov_b32 {V(pq+8*h+7)}, 0")
        L = self.lab("xc")
        a.I(f"s_cmp_lg_u32 {S(sLAY)}, 0")
        a.I(f"s_cbranch_scc1 {L}")
        a.I(f"s_add_u32 {S(sT1)}, {S(sRFP)}, {F_XCC - F_ROW}")
        a.I(f"s_mov_b32 {S(sT2)}, 1")
        self.poll(sT1, sT2)
        a.I(f"v_readfirstlane_b32 {S(sT2)}, {V(vTMP)}")
        a.I(f"v_cmp_ne_u32 vcc, {S(sT2)}, {V(vTMP)}")
        a.I("s_cmp_eq_u64 vcc, 0")
        a.I(f"s_cselect_b32 {S(sFAST)}, {1 if cfg.get('fast', 1) else 0}, 0")
        a.flush_hazards()
        a.label(L)
        self.poll(sCFP, sLAY, plus=1)
        self.stamp(3)
        kb = wb
        a.I(f"s_mov_b32 {S(sA)}, {S(sKVR)}")
        toks = []
        for g in range(16):
            toks.append(a.I(f"buffer_load_dwordx4 {V(kb+4*g,4)}, {V(vT16)}, {S(WS,4)}, {S(sA)} offen sc1"))
            if g < 15:
                a.I(f"s_add_u32 {S(sA)}, {S(sA)}, 4096")
        self.pretouch(vPTX, sXD, XP_SZ)()
        for j in cfg['w3_at_kvload']:
            for c in self.dma_step(sW3, j):
                c()
        for g in range(1, 16):
            a.wait(toks[g])
            a.I(f"v_pk_add_f32 {V(kb,2)}, {V(kb,2)}, {V(kb+4*g,2)}")
            a.I(f"v_pk_add_f32 {V(kb+2,2)}, {V(kb+2,2)}, {V(kb+4*g+2,2)}")
        a.I(f"v_cvt_pk_bf16_f32 {V(kb)}, {V(kb)}, {V(kb+1)}")
        a.I(f"v_cvt_pk_bf16_f32 {V(kb+1)}, {V(kb+2)}, {V(kb+3)}")
        a.I(f"ds_write_b64 {V(vKAW)}, {V(kb,2)}")
        a.drain_lg()
        a.I("s_barrier")
        ka = kb + 4
        for h in range(2):
            for s in range(2):
                a.I(f"ds_read_b128 {V(ka+8*h+4*s,4)}, {V(vKA0+h)} offset:{32*s}")
        a.drain_lg()
        Do = acc + 16
        for h in range(2):
            a.I(f"v_mfma_f32_32x32x16_bf16 {V(Do+16*h,16)}, {V(ka+8*h,4)}, {V(pq+8*h,4)}, 0")
        for h in range(2):
            a.I(f"v_mfma_f32_32x32x16_bf16 {V(Do+16*h,16)}, {V(ka+8*h+4,4)}, {V(pq+8*h+4,4)}, {V(Do+16*h,16)}")
        og = kb + 20
        for h in range(2):
            d = Do + 16 * h
            a.I(f"v_add_f32 {V(d+12)}, 0x{f2u(1e-6):x}, {V(d+12)}")
            a.I(f"v_rcp_f32 {V(d+12)}, {V(d+12)}")
        for h in range(2):
            d = Do + 16 * h
            for r in range(0, 12, 2):
                a.I(f"v_pk_mul_f32 {V(d+r,2)}, {V(d+r,2)}, {V(d+12,2)} op_sel_hi:[1,0]")
            for r in range(4):
                a.I(f"v_cvt_pk_bf16_f32 {V(og+4*h+r)}, {V(d+2*r)}, {V(d+2*r+1)}")
            for r in range(2):
                a.I(f"v_cvt_pk_bf16_f32 {V(og+8+2*h+r)}, {V(d+8+2*r)}, {V(d+9+2*r)}")

        def stores(mod):
            a.I(f"buffer_store_dwordx4 {V(og,4)}, {V(vOST)}, {S(WS,4)}, {S(sOW)} offen {mod}")
            a.I(f"buffer_store_dwordx4 {V(og+4,4)}, {V(vOST)}, {S(WS,4)}, {S(sOW)} offen offset:768 {mod}")
            a.I("s_mov_b32 exec_hi, 0")
            a.I(f"buffer_store_dwordx4 {V(og+8,4)}, {V(vOST)}, {S(WS,4)}, {S(sOW)} offen offset:512 {mod}")
            a.I("s_mov_b64 exec, -1")
        a.dual(S(sFAST), stores, self.lab("os"))
        self.publish_row()
        self.stamp(4)

    def p2(self):
        a, cfg = self.a, self.cfg
        self.poll(sRFP, sSEQ)
        self.stamp(5)
        bg = []
        for j in cfg['w3_at_p2']:
            bg += self.dma_step(sW3, j)
        self.ksplit_gemm(5, self.w2regs, [('a', 4 * i) for i in range(20)], sOA, cfg['p2_afirst'], bg, cfg['p2_bg'])
        self.stamp(6)
        self.resid_epilogue(False)
        self.stamp(7)

    def p3(self):
        a, cfg = self.a, self.cfg
        self.poll(sRFP, sSEQ)
        self.stamp(8)
        acc, wb = W0, W0 + 96
        raw = wb + 72
        self.w4regs = [('a', 160 + 4 * i) for i in range(24)] + [('a', 4 * i) for i in range(36)]
        fill = {}
        fill.setdefault(cfg['p3_pt'], []).append(self.pretouch(vPTH, sHW, 0))
        w4l = self.seq_loads(sW4, sB, self.w4regs)
        k = cfg['p3_bg']
        i = 0
        while i < 60 and k < 40:
            for _ in range(cfg['p3_bgrate']):
                if i < 60 and (i < 24 or i - 24 < k):
                    fill.setdefault(k, []).append(w4l[i])
                    i += 1
            k += 1
        rest = w4l[i:]
        a.I(f"s_add_u32 {S(sT2)}, {S(sXA)}, {XP_SZ}")
        pre = len(cfg['w3_at_kvwait']) + len(cfg['w3_at_kvload']) + len(cfg['w3_at_p2'])
        self.ring_gemm(6, acc, wb, True, sT2, sW3, 15, pre, cfg['p3_afirst'], cfg['p3_arate'],
                       cfg['p3_dma'], cfg['p3_bar'], fill, stats_off=0x20000, stats_dst=raw)
        self.stamp(9)
        for c in rest:
            c()
        a.I(f"s_add_u32 {S(sT2)}, {S(sXD)}, {XP_SZ}")
        self.pretouch(vPTX, sT2, 0)()
        cs = wb
        t = wb + 64
        hg = raw + 4
        bc_rstd = f"{V(raw,2)}"
        rtok = {}

        def rdcs(p):
            for u in range(2):
                for q in range(4):
                    rtok[p] = a.I(f"ds_read_b128 {V(cs+32*(p&1)+16*u+4*q,4)}, {V(vCS3R)} offset:{(2*p+u)*128+32*q}")
        rdcs(0)
        rdcs(1)
        a.I(f"s_mov_b32 {S(sA)}, {S(sHW)}")
        for p in range(3):
            a.wait(rtok[p])
            G, U = acc + 32 * p, acc + 32 * p + 16
            cg, cu = cs + 32 * (p & 1), cs + 32 * (p & 1) + 16
            for r in range(0, 16, 2):
                a.I(f"v_pk_fma_f32 {V(G+r,2)}, {V(cg+r,2)}, {bc_rstd}, {V(G+r,2)} op_sel:[0,1,0] op_sel_hi:[1,1,1]")
                a.I(f"v_pk_fma_f32 {V(U+r,2)}, {V(cu+r,2)}, {bc_rstd}, {V(U+r,2)} op_sel:[0,1,0] op_sel_hi:[1,1,1]")
            if p == 0:
                rdcs(2)
            z = cu if p != 0 else t
            for half in range(2):
                r0 = 8 * half
                zz = t
                for r in range(0, 8, 2):
                    a.I(f"v_pk_mul_f32 {V(G+r0+r,2)}, {V(G+r0+r,2)}, {bc_rstd} op_sel_hi:[1,0]")
                for r in range(0, 8, 2):
                    a.I(f"v_pk_mul_f32 {V(zz+r,2)}, {V(G+r0+r,2)}, {V(G+r0+r,2)}")
                for r in range(0, 8, 2):
                    a.I(f"v_pk_mul_f32 {V(zz+r,2)}, {V(zz+r,2)}, {S(sC1,2)}")
                for r in range(0, 8, 2):
                    a.I(f"v_pk_add_f32 {V(zz+r,2)}, {V(zz+r,2)}, {S(sC0,2)}")
                for r in range(0, 8, 2):
                    a.I(f"v_pk_mul_f32 {V(zz+r,2)}, {V(zz+r,2)}, {V(G+r0+r,2)}")
                for r in range(8):
                    a.I(f"v_exp_f32 {V(zz+r)}, {V(zz+r)}")
                    if r & 1:
                        a.I(f"v_pk_mul_f32 {V(U+r0+r-1,2)}, {V(U+r0+r-1,2)}, {V(G+r0+r-1,2)}")
                for r in range(0, 8, 2):
                    a.I(f"v_pk_fma_f32 {V(zz+r,2)}, {V(zz+r,2)}, {V(raw+2,2)}, {V(raw+2,2)} op_sel_hi:[1,0,0]")
                for r in range(8):
                    a.I(f"v_rcp_f32 {V(zz+r)}, {V(zz+r)}")
                for r in range(0, 8, 2):
                    a.I(f"v_pk_mul_f32 {V(U+r0+r,2)}, {V(U+r0+r,2)}, {V(zz+r,2)}")
                for r in range(4):
                    a.I(f"v_cvt_pk_bf16_f32 {V(hg+4*half+r)}, {V(U+r0+2*r)}, {V(U+r0+2*r+1)}")

            def stores(mod, p=p):
                a.I(f"buffer_store_dwordx4 {V(hg,4)}, {V(vHST)}, {S(WS,4)}, {S(sA)} offen offset:{p*1024} {mod}")
                a.I(f"buffer_store_dwordx4 {V(hg+4,4)}, {V(vHST)}, {S(WS,4)}, {S(sA)} offen offset:{p*1024+512} {mod}")
            a.dual(S(sFAST), stores, self.lab("hs"))
        self.publish_row()
        self.stamp(10)

    def p4(self):
        a, cfg, name = self.a, self.cfg, self.name
        a.I(f"s_cmp_eq_u32 {S(sLAY)}, 0")
        a.I(f"s_cselect_b32 {S(WSZ+2)}, {WS_BYTES}, 0")
        self.poll(sRFP, sSEQ)
        self.stamp(11)
        bg = []
        for j in range(cfg['w1_pre']):
            bg += self.dma_step(sW1, j, WSZ)
        aring = [('v', W0 + 140 + 4 * i) for i in range(18)] + [('a', 144 + 4 * i) for i in range(4)]
        self.ksplit_gemm(12, self.w4regs, aring, sHA, cfg['p4_afirst'], bg, cfg['p4_bg'])
        self.stamp(12)
        Lout, st = self.resid_epilogue(True)
        self.stamp(13)
        a.I(f"s_mov_b32 {S(sLAY)}, 1")
        a.I(f"s_add_u32 {S(sXA)}, {S(sXA)}, {2*XP_SZ}")
        a.I(f"s_add_u32 {S(sSTR)}, {S(sSTR)}, 0x40000")
        a.I(f"s_add_u32 {S(sOW)}, {S(sOW)}, {XP_SZ}")
        a.I(f"s_add_u32 {S(sHW)}, {S(sHW)}, {HP_SZ}")
        for r in range(4):
            a.I(f"s_add_u32 {S(sOA+r)}, {S(sOA+r)}, {XP_SZ}")
            a.I(f"s_add_u32 {S(sHA+r)}, {S(sHA+r)}, {HP_SZ}")
        a.I(f"s_add_u32 {S(sKVW)}, {S(sKVW)}, 0x100000")
        a.I(f"s_add_u32 {S(sKVR)}, {S(sKVR)}, 0x100000")
        a.I(f"s_add_u32 {S(sSTAMP)}, {S(sSTAMP)}, 64")
        a.flush_hazards()
        a.I(f"s_branch {name}_layer")
        a.restore(st)
        a.label(Lout)
        t = W0
        a.I(f"v_and_b32 {V(t)}, 15, {V(vLANE)}")
        a.I(f"v_lshrrev_b32 {V(t+1)}, 4, {V(vLANE)}")
        a.I(f"v_mul_u32_u24 {V(t)}, 1280, {V(t)}")
        a.I(f"v_lshl_add_u32 {V(t+2)}, {V(t+1)}, 4, {V(t)}")
        a.I(f"v_lshl_add_u32 {V(t+3)}, {V(t+1)}, 3, {V(t)}")
        a.I(f"s_mul_i32 {S(sT0)}, {S(sG)}, {128*1280}")
        a.I(f"s_mul_i32 {S(sT1)}, {S(sHF)}, {64*1280}")
        a.I(f"s_add_u32 {S(sT0)}, {S(sT0)}, {S(sT1)}")
        a.I(f"s_mul_i32 {S(sT1)}, {S(sW)}, {16*1280}")
        a.I(f"s_add_u32 {S(sT0)}, {S(sT0)}, {S(sT1)}")
        a.I(f"s_mul_i32 {S(sT1)}, {S(sSL)}, 160")
        a.I(f"s_add_u32 {S(sT0)}, {S(sT0)}, {S(sT1)}")
        a.I(f"buffer_store_dwordx4 {V(vRES,4)}, {V(t+2)}, {S(OUT,4)}, {S(sT0)} offen")
        a.I(f"buffer_store_dwordx4 {V(vRES+4,4)}, {V(t+2)}, {S(OUT,4)}, {S(sT0)} offen offset:64")
        a.I(f"buffer_store_dwordx2 {V(vRES+8,2)}, {V(t+3)}, {S(OUT,4)}, {S(sT0)} offen offset:128")
        self.stamp(14)
```

```python
from asmlib import *
from layout import *

OOB = 0x40000000


def ids(a, sg, sm, st):
    a.I(f"s_and_b32 {S(sg)}, s2, 7")
    a.I(f"s_lshl_b32 {S(sg)}, {S(sg)}, 1")
    a.I(f"s_lshr_b32 {S(st)}, s2, 7")
    a.I(f"s_add_u32 {S(sg)}, {S(sg)}, {S(st)}")
    a.I(f"s_lshr_b32 {S(sm)}, s2, 3")
    a.I(f"s_and_b32 {S(sm)}, {S(sm)}, 15")


def srd(a, d, ptr, nbytes):
    a.I(f"s_mov_b32 {S(d)}, {S(ptr)}")
    a.I(f"s_mov_b32 {S(d+1)}, {S(ptr+1)}")
    a.I(f"s_mov_b32 {S(d+2)}, {nbytes}")
    a.I(f"s_mov_b32 {S(d+3)}, 0x20000")


def gen_pack(a, name, st_mod=""):
    a.raw(f".globl {name}\n.p2align 8\n.type {name},@function\n{name}:")
    a.I("s_cmp_ge_u32 s2, 256")
    a.I(f"s_cbranch_scc1 {name}_end")
    a.I("s_load_dwordx16 s[4:19], s[0:1], 0")
    a.I("s_load_dwordx2 s[20:21], s[0:1], 72")
    SG, SM, SW, SY, ST0, ST1, SSO, SDO = 22, 23, 24, 25, 26, 27, 28, 29
    ids(a, SG, SM, ST0)
    a.I("v_lshrrev_b32 v1, 6, v0")
    a.I(f"v_readfirstlane_b32 {S(SW)}, v1")
    a.I("v_and_b32 v0, 63, v0")
    a.I("v_and_b32 v1, 31, v0")
    a.I("v_lshrrev_b32 v2, 5, v0")
    a.I("v_lshlrev_b32 v3, 4, v0")
    a.I("v_mov_b32 v4, 0x3f803f80")
    a.I("s_waitcnt lgkmcnt(0)")
    WS, SRC = 32, 36
    srd(a, WS, 20, WS_BYTES)
    a.I(f"s_lshr_b32 {S(SY)}, {S(SM)}, 3")
    a.I(f"s_lshl_b32 {S(SY)}, {S(SY)}, 4")
    a.I(f"s_add_u32 {S(SY)}, {S(SY)}, {S(SG)}")
    SG2, SGO, SSL = 30, 31, 40
    a.I(f"s_lshr_b32 {S(SG2)}, {S(SG)}, 1")
    a.I(f"s_and_b32 {S(SGO)}, {S(SG)}, 1")
    a.I(f"s_and_b32 {S(SSL)}, {S(SM)}, 7")

    def frag_loads(vcol, rowb, base_reg):
        for i in range(8):
            if i:
                a.I(f"s_add_u32 {S(ST1)}, {S(SSO)}, {i*rowb}")
            a.I(f"buffer_load_ushort {V(base_reg+i)}, {V(vcol)}, {S(SRC,4)}, {S(ST1 if i else SSO)} offen")

    def frag_pack(base_reg, dst, cs=None):
        for q in range(4):
            a.I(f"v_lshl_or_b32 {V(dst+q)}, {V(base_reg+2*q+1)}, 16, {V(base_reg+2*q)}")
        if cs is not None:
            for q in range(4):
                a.I(f"v_dot2c_f32_bf16 {V(cs)}, {V(dst+q)}, v4")

    def col_job(vcol, rowb, dst_stride, cs_store):
        a.I("v_mov_b32 v9, 0")
        for u in range(5):
            frag_loads(vcol, rowb, 16 + 8 * u)
            if u < 4:
                a.I(f"s_add_u32 {S(SSO)}, {S(SSO)}, {16*rowb}")
        a.drain_vm()
        for u in range(5):
            frag_pack(16 + 8 * u, 56 + 4 * u, cs=9)
            a.I(f"buffer_store_dwordx4 {V(56+4*u,4)}, v3, {S(WS,4)}, {S(SDO)} offen {st_mod}")
            if u < 4:
                a.I(f"s_add_u32 {S(SDO)}, {S(SDO)}, {dst_stride}")
        a.I("v_mov_b32 v10, v9")
        a.I("v_permlane32_swap_b32 v9, v10")
        a.I("v_add_f32 v9, v9, v10")
        cs_store()

    def w1_job():
        ST_T = 41
        a.I(f"s_lshl_b32 {S(ST_T)}, {S(SGO)}, 1")
        a.I(f"s_add_u32 {S(ST_T)}, {S(ST_T)}, {S(SW)}")
        srd(a, SRC, 6, 640 * 1920 * 2)
        a.I("v_add_u32 v5, 672, v1")
        a.I("v_add_u32 v6, 24, v1")
        a.I("v_cmp_lt_u32 vcc, 7, v1")
        a.I("v_cndmask_b32 v5, v5, v6, vcc")
        a.I("v_add_u32 v6, 1295, v1")
        a.I("v_cmp_lt_u32 vcc, 15, v1")
        a.I("v_cndmask_b32 v5, v5, v6, vcc")
        a.I(f"v_mov_b32 v7, {OOB >> 1}")
        a.I("v_cmp_lt_u32 vcc, 24, v1")
        a.I("v_cndmask_b32 v5, v5, v7, vcc")
        a.I("v_add_u32 v6, 1280, v1")
        a.I("v_cmp_eq_u32 vcc, 31, v1")
        a.I("v_cndmask_b32 v6, v6, v7, vcc")
        a.I("v_add_u32 v7, 640, v1")
        a.I("v_mov_b32 v8, v1")
        for tt, vr in ((0, 7), (1, 5), (2, 6)):
            a.I(f"s_cmp_eq_u32 {S(ST_T)}, {tt}")
            a.I("s_cselect_b64 s[42:43], -1, 0")
            a.I(f"v_cndmask_b32 v8, v8, {V(vr)}, s[42:43]")
        a.I("v_lshlrev_b32 v8, 1, v8")
        a.I("v_mul_u32_u24 v6, 30720, v2")
        a.I("v_add_u32 v8, v8, v6")
        a.I(f"s_mul_i32 {S(SSO)}, {S(SG2)}, {80*3840}")
        a.I(f"s_mul_i32 {S(ST0)}, {S(SM)}, 80")
        a.I(f"s_add_u32 {S(SSO)}, {S(SSO)}, {S(ST0)}")
        a.I(f"s_mul_i32 {S(SDO)}, {S(SM)}, 163840")
        a.I(f"s_mul_i32 {S(ST0)}, {S(SG2)}, {5*4096}")
        a.I(f"s_add_u32 {S(SDO)}, {S(SDO)}, {S(ST0)}")
        a.I(f"s_lshl_b32 {S(ST0)}, {S(ST_T)}, 10")
        a.I(f"s_add_u32 {S(SDO)}, {S(SDO)}, {S(ST0)}")
        a.I(f"s_add_u32 {S(SDO)}, {S(SDO)}, {W1P}")

        def cs():
            a.I(f"s_lshl_b32 {S(ST0)}, {S(SM)}, 12")
            a.I(f"s_lshl_b32 {S(ST1)}, {S(SG2)}, 9")
            a.I(f"s_add_u32 {S(ST0)}, {S(ST0)}, {S(ST1)}")
            a.I(f"s_lshl_b32 {S(ST1)}, {S(ST_T)}, 2")
            a.I(f"s_add_u32 {S(ST0)}, {S(ST0)}, {S(ST1)}")
            a.I(f"s_add_u32 {S(ST0)}, {S(ST0)}, {CS1}")
            a.I("s_mov_b32 exec_hi, 0")
            a.I(f"buffer_store_dword v9, v3, {S(WS,4)}, {S(ST0)} offen {st_mod}")
            a.I("s_mov_b64 exec, -1")
        col_job(8, 3840, 4096, cs)

    def w3_job():
        a.I(f"s_cmp_eq_u32 {S(SGO)}, 0")
        a.I("s_cselect_b32 s42, s12, s14")
        a.I("s_cselect_b32 s43, s13, s15")
        srd(a, SRC, 42, 640 * 1536 * 2)
        a.I("v_and_b32 v5, 19, v1")
        a.I("v_and_b32 v6, 4, v1")
        a.I("v_lshl_or_b32 v5, v6, 1, v5")
        a.I("v_and_b32 v6, 8, v1")
        a.I("v_lshrrev_b32 v6, 1, v6")
        a.I("v_or_b32 v5, v5, v6")
        a.I("v_lshlrev_b32 v8, 1, v5")
        a.I("v_mul_u32_u24 v6, 24576, v2")
        a.I("v_add_u32 v8, v8, v6")
        a.I(f"s_mul_i32 {S(SSO)}, {S(SG2)}, {80*3072}")
        a.I(f"s_mul_i32 {S(ST0)}, {S(SM)}, 192")
        a.I(f"s_add_u32 {S(SSO)}, {S(SSO)}, {S(ST0)}")
        a.I(f"s_lshl_b32 {S(ST0)}, {S(SW)}, 6")
        a.I(f"s_add_u32 {S(SSO)}, {S(SSO)}, {S(ST0)}")
        ST_T = 41
        a.I(f"s_lshl_b32 {S(ST_T)}, {S(SW)}, 1")
        a.I(f"s_add_u32 {S(ST_T)}, {S(ST_T)}, {S(SGO)}")
        a.I(f"s_mul_i32 {S(SDO)}, {S(SM)}, 245760")
        a.I(f"s_mul_i32 {S(ST0)}, {S(SG2)}, {5*6144}")
        a.I(f"s_add_u32 {S(SDO)}, {S(SDO)}, {S(ST0)}")
        a.I(f"s_lshl_b32 {S(ST0)}, {S(ST_T)}, 10")
        a.I(f"s_add_u32 {S(SDO)}, {S(SDO)}, {S(ST0)}")
        a.I(f"s_add_u32 {S(SDO)}, {S(SDO)}, {W3P}")

        def cs():
            a.I(f"s_mul_i32 {S(ST0)}, {S(SM)}, 6144")
            a.I(f"s_mul_i32 {S(ST1)}, {S(SG2)}, 768")
            a.I(f"s_add_u32 {S(ST0)}, {S(ST0)}, {S(ST1)}")
            a.I(f"s_lshl_b32 {S(ST1)}, {S(ST_T)}, 7")
            a.I(f"s_add_u32 {S(ST0)}, {S(ST0)}, {S(ST1)}")
            a.I(f"s_add_u32 {S(ST0)}, {S(ST0)}, {CS3}")
            a.I("v_lshlrev_b32 v10, 2, v1")
            a.I("s_mov_b32 exec_hi, 0")
            a.I(f"buffer_store_dword v9, v10, {S(WS,4)}, {S(ST0)} offen {st_mod}")
            a.I("s_mov_b64 exec, -1")
        col_job(8, 3072, 6144, cs)

    def n640_job(ptr, src_rows, nfr, limit, dst_base, dst_slice, lbl):
        a.I(f"s_cmp_ge_u32 {S(SY)}, {limit}")
        a.I(f"s_cbranch_scc1 {lbl}")
        srd(a, SRC, ptr, src_rows * 1280)
        a.I("v_and_b32 v5, 15, v0")
        a.I("v_lshrrev_b32 v6, 4, v0")
        a.I("v_mul_u32_u24 v6, 10240, v6")
        a.I("v_lshl_add_u32 v7, v5, 1, v6")
        a.I("v_and_b32 v8, 12, v5")
        a.I("v_add_u32 v8, v8, v5")
        a.I("v_lshl_add_u32 v8, v8, 1, v6")
        SF, SKS, STT = 41, 44, 45
        a.I(f"s_mul_i32 {S(SF)}, {S(SY)}, {nfr}")
        a.I(f"s_mul_i32 {S(SDO)}, {S(SSL)}, {dst_slice}")
        a.I(f"s_lshl_b32 {S(ST0)}, {S(SF)}, 10")
        a.I(f"s_add_u32 {S(SDO)}, {S(SDO)}, {S(ST0)}")
        a.I(f"s_add_u32 {S(SDO)}, {S(SDO)}, {dst_base}")
        for b0 in range(0, nfr, 4):
            for q in range(4):
                a.I(f"s_mul_i32 {S(SKS)}, {S(SF)}, 205")
                a.I(f"s_lshr_b32 {S(SKS)}, {S(SKS)}, 10")
                a.I(f"s_mul_i32 {S(ST0)}, {S(SKS)}, 5")
                a.I(f"s_sub_u32 {S(STT)}, {S(SF)}, {S(ST0)}")
                a.I(f"s_mul_i32 {S(SSO)}, {S(SKS)}, {32*1280}")
                a.I(f"s_mul_i32 {S(ST0)}, {S(SSL)}, 160")
                a.I(f"s_add_u32 {S(SSO)}, {S(SSO)}, {S(ST0)}")
                a.I(f"s_lshr_b32 {S(ST0)}, {S(STT)}, 1")
                a.I(f"s_lshl_b32 {S(ST0)}, {S(ST0)}, 6")
                a.I(f"s_add_u32 {S(SSO)}, {S(SSO)}, {S(ST0)}")
                a.I(f"s_and_b32 {S(ST0)}, {S(STT)}, 1")
                a.I(f"s_lshl_b32 {S(ST0)}, {S(ST0)}, 3")
                a.I(f"s_add_u32 {S(SSO)}, {S(SSO)}, {S(ST0)}")
                a.I(f"s_cmp_eq_u32 {S(STT)}, 4")
                a.I("s_cselect_b64 s[42:43], -1, 0")
                a.I(f"v_cndmask_b32 {V(11+q)}, v8, v7, s[42:43]")
                frag_loads(11 + q, 1280, 16 + 8 * q)
                a.I(f"s_add_u32 {S(SF)}, {S(SF)}, 1")
            a.drain_vm()
            for q in range(4):
                frag_pack(16 + 8 * q, 56 + 4 * q)
                a.I(f"buffer_store_dwordx4 {V(56+4*q,4)}, v3, {S(WS,4)}, {S(SDO)} offen offset:{q*1024} {st_mod}")
            a.I(f"s_add_u32 {S(SDO)}, {S(SDO)}, 4096")
        a.flush_hazards()
        a.label(lbl)

    def x_job():
        srd(a, SRC, 4, 2048 * 1280)
        a.I("v_and_b32 v5, 7, v0")
        a.I("v_lshrrev_b32 v6, 3, v0")
        a.I("v_mul_u32_u24 v7, 1280, v5")
        a.I("v_lshl_add_u32 v7, v6, 4, v7")
        a.I("v_lshlrev_b32 v8, 4, v5")
        a.I("v_lshl_add_u32 v8, v6, 9, v8")
        a.I(f"s_lshl_b32 {S(ST0)}, {S(SG)}, 4")
        a.I(f"s_add_u32 {S(ST0)}, {S(ST0)}, {S(SM)}")
        a.I(f"s_mul_i32 {S(SSO)}, {S(ST0)}, {8*1280}")
        for i in range(10):
            a.I(f"buffer_load_dwordx4 {V(16+4*i,4)}, v7, {S(SRC,4)}, {S(SSO)} offen offset:{i*128}")
        a.I(f"s_mul_i32 {S(SDO)}, {S(SG)}, 163840")
        a.I(f"s_lshr_b32 {S(ST0)}, {S(SM)}, 2")
        a.I(f"s_mul_i32 {S(ST0)}, {S(ST0)}, 40960")
        a.I(f"s_add_u32 {S(SDO)}, {S(SDO)}, {S(ST0)}")
        a.I(f"s_and_b32 {S(ST0)}, {S(SM)}, 3")
        a.I(f"s_lshl_b32 {S(ST0)}, {S(ST0)}, 7")
        a.I(f"s_add_u32 {S(SDO)}, {S(SDO)}, {S(ST0)}")
        a.I(f"s_add_u32 {S(SDO)}, {S(SDO)}, {XP}")
        a.I("v_mov_b32 v10, 0")
        a.I("v_mov_b32 v11, 0")
        a.drain_vm()
        for i in range(10):
            a.I(f"buffer_store_dwordx4 {V(16+4*i,4)}, v8, {S(WS,4)}, {S(SDO)} offen {st_mod}")
            a.I(f"s_add_u32 {S(SDO)}, {S(SDO)}, 4096")
            for q in range(4):
                a.I(f"v_dot2c_f32_bf16 v10, {V(16+4*i+q)}, v4")
                a.I(f"v_dot2c_f32_bf16 v11, {V(16+4*i+q)}, {V(16+4*i+q)}")
        for r in (10, 11):
            a.I(f"v_add_f32_dpp {V(r)}, {V(r)}, {V(r)} row_ror:8 row_mask:0xf bank_mask:0xf")
        for ins in ("v_permlane16_swap_b32", "v_permlane32_swap_b32"):
            a.I("v_mov_b32 v12, v10")
            a.I("v_mov_b32 v13, v11")
            a.I(f"{ins} v10, v12")
            a.I(f"{ins} v11, v13")
            a.I("v_add_f32 v10, v10, v12")
            a.I("v_add_f32 v11, v11, v13")
        a.I("v_cmp_eq_u32 vcc, 0, v6")
        a.I("v_cndmask_b32 v10, 0, v10, vcc")
        a.I("v_cndmask_b32 v11, 0, v11, vcc")
        a.I("v_lshlrev_b32 v8, 3, v5")
        a.I("v_lshl_add_u32 v8, v6, 10, v8")
        a.I(f"s_lshl_b32 {S(SDO)}, {S(SG)}, 13")
        a.I(f"s_lshl_b32 {S(ST0)}, {S(SM)}, 6")
        a.I(f"s_add_u32 {S(SDO)}, {S(SDO)}, {S(ST0)}")
        a.I(f"s_add_u32 {S(SDO)}, {S(SDO)}, {ST}")
        a.I(f"buffer_store_dwordx2 v[10:11], v8, {S(WS,4)}, {S(SDO)} offen {st_mod}")

    a.I(f"s_cmp_eq_u32 {S(SW)}, 3")
    a.I(f"s_cbranch_scc1 {name}_w3")
    a.I(f"s_cmp_eq_u32 {S(SW)}, 2")
    a.I(f"s_cbranch_scc1 {name}_w2")
    w1_job()
    a.flush_hazards()
    a.label(f"{name}_w2")
    w3_job()
    a.I(f"s_cmp_eq_u32 {S(SW)}, 2")
    a.I(f"s_cbranch_scc0 {name}_end")
    n640_job(8, 640, 4, 25, W2P, 102400, f"{name}_w2done")
    a.I(f"s_branch {name}_end")
    a.label(f"{name}_w3")
    x_job()
    n640_job(16, 1536, 8, 30, W4P, 245760, f"{name}_w4done")
    a.I(f"s_cmp_ge_u32 s2, {F_END // 1024}")
    a.I(f"s_cbranch_scc1 {name}_end")
    for q in range(4):
        a.I(f"v_mov_b32 {V(16+q)}, 0")
    a.I(f"s_lshl_b32 {S(ST0)}, s2, 10")
    a.I(f"buffer_store_dwordx4 v[16:19], v3, {S(WS,4)}, {S(ST0)} offen {st_mod}")
    a.label(f"{name}_end")
    a.I("s_endpgm")


def kd(name, vgpr, accum, sgpr=102):
    return f"""
.amdhsa_kernel {name}
  .amdhsa_next_free_vgpr {vgpr}
  .amdhsa_next_free_sgpr {sgpr}
  .amdhsa_accum_offset {accum}
  .amdhsa_group_segment_fixed_size 0
  .amdhsa_kernarg_size 80
  .amdhsa_user_sgpr_count 2
  .amdhsa_user_sgpr_kernarg_segment_ptr 1
  .amdhsa_system_sgpr_workgroup_id_x 1
.end_amdhsa_kernel
"""
```

```python
WS_BYTES = 268435456
F_ROW = 0x0000
F_XCC = 0x0800
F_COL = 0x1000
F_END = 0x9000
CS1 = 0x10000
CS3 = 0x30000
KVP = 0x60000
ST = 0x260000
W1P = 0x300000
W3P = 0x580000
W2P = 0x940000
W4P = 0xA10000
XP = 0xC00000
XP_SZ = 0x280000
OP = 0x1600000
HP = 0x1B00000
HP_SZ = 0x600000
STAMP = 0x2800000


def w1_col(m, T, j):
    if T == 0:
        return 640 + 40 * m + j
    if T == 1:
        if j < 8:
            return 640 + 40 * m + 32 + j
        if j < 16:
            return 40 * m + 24 + j
        if j < 25:
            return 1280 + 40 * m + 15 + j
        return None
    if T == 2:
        return 1280 + 40 * m + j if j < 31 else None
    return 40 * m + j


def nperm32(j):
    return 16 * (j >> 4) + 8 * ((j >> 2) & 1) + 4 * ((j >> 3) & 1) + (j & 3)


def w2_col(sl, T, j):
    if T < 4:
        return 80 * sl + 32 * (T >> 1) + 8 * (j >> 2) + 4 * (T & 1) + (j & 3)
    return 80 * sl + 64 + j
```

```python
import sys, json
from asmlib import *
from layout import *
from gen_pack import gen_pack, kd
from gen_main import Main, LDS_BYTES

KN = "interleave_layers__linear_attn_block__geglu_ffn__prompt"
DEFAULT = dict(
    w1_pre=5, p1_afirst=8, p1_arate=1.5, p1_dma={5: 1, 6: 3, 7: 5, 8: 7, 9: 9}, p1_bar=[4, 16, 25], p1_bg=24,
    w3_at_kvwait=[0, 1, 2], w3_at_kvload=[3], w3_at_p2=[4], p2_afirst=5, p2_bg=15,
    p3_afirst=8, p3_arate=2, p3_dma={5: 1, 6: 3, 7: 5, 8: 7, 9: 10, 10: 12, 11: 14, 12: 16, 13: 18, 14: 20},
    p3_bar=[10, 15, 21, 29], p3_pt=17, p3_bg=18, p3_bgrate=3,
    p4_afirst=8, p4_bg=10, dma_per_ks=2, fast=1, stamps=0,
)

def build(cfg):
    hdr = open("cdna_kernels/%s.s.ref" % KN).read().split("; Override")[0]
    out = hdr
    out += f"; @launch kernel=pack_kernel grid=(256,1,1) block=(256,1,1) lds=0\n"
    out += f"; @launch kernel={KN}_kernel grid=(256,1,1) block=(256,1,1) lds={LDS_BYTES}\n"
    out += '.amdgcn_target "amdgcn-amd-amdhsa--gfx950"\n.text\n'
    a = Asm()
    gen_pack(a, "pack_kernel")
    out += a.text()
    b = Asm()
    Main(b, KN + "_kernel", cfg).gen()
    out += b.text()
    out += '.section .rodata,"a"\n.p2align 6\n'
    out += kd("pack_kernel", 80, 80) + ".p2align 6\n" + kd(KN + "_kernel", 512, 256)
    info = dict(max_vm=b.max_vm_out, nops=b.nops, ninstr=sum(b.count.values()))
    return out, info

if __name__ == "__main__":
    cfg = dict(DEFAULT)
    path = sys.argv[1]
    for kv in sys.argv[2:]:
        k, v = kv.split("=", 1)
        cfg[k] = eval(v)
    out, info = build(cfg)
    open(path, "w").write(out)
    print(path, info)
```

```python
import re

REG_RE = re.compile(r'^(-|abs\()?([vas])(\d+)\)?$')
RNG_RE = re.compile(r'^(-)?([vas])\[(\d+):(\d+)\]$')
TRANS = ('v_exp_f32', 'v_log_f32', 'v_rcp_f32', 'v_rsq_f32', 'v_sqrt_f32', 'v_sin_f32', 'v_cos_f32')


def regs_of(tok):
    tok = tok.strip()
    m = REG_RE.match(tok)
    if m:
        return [(m.group(2), int(m.group(3)))]
    m = RNG_RE.match(tok)
    if m:
        return [(m.group(2), i) for i in range(int(m.group(3)), int(m.group(4)) + 1)]
    if tok == 'vcc':
        return [('s', 'vcc')]
    if tok == 'exec':
        return [('s', 'exec')]
    if tok == 'm0':
        return [('s', 'm0')]
    return []


def V(i, n=1):
    return f"v{i}" if n == 1 else f"v[{i}:{i+n-1}]"


def A(i, n=1):
    return f"a{i}" if n == 1 else f"a[{i}:{i+n-1}]"


def S(i, n=1):
    return f"s{i}" if n == 1 else f"s[{i}:{i+n-1}]"


def R(r, n=1):
    return V(r[1], n) if r[0] == 'v' else A(r[1], n)


class Asm:
    def __init__(self):
        self.lines = []
        self.pos = 0
        self.valu_w = {}
        self.trans_w = {}
        self.mfma_d = {}
        self.mfma_c = {}
        self.valu_sw = {}
        self.m0_w = -100
        self.store_data = {}
        self.dot_w = {}
        self.vm_issued = 0
        self.vm_done = 0
        self.lg_issued = 0
        self.lg_done = 0
        self.max_vm_out = 0
        self.nops = 0
        self.hookq = []
        self.hook_every = 0
        self.hook_cnt = 0
        self.hook_off = 0
        self.exec_full = True
        self.bar_vm = 0
        self.bar_lg = 0
        self.l_dma = {}
        self.l_acc = {}
        self.l_dsw = {}
        self.count = {}

    def raw(self, text):
        self.lines.append(text)

    def comment(self, text):
        self.lines.append("    ; " + text)

    def label(self, name):
        self.lines.append(name + ":")

    def nop(self, n):
        while n > 0:
            k = min(n, 16)
            self.lines.append(f"    s_nop {k-1}")
            self.pos += k
            self.nops += k
            n -= k

    def flush_hazards(self):
        need = 0
        for r, (p, passes, f, sz) in self.mfma_d.items():
            need = max(need, (12 if passes == 8 else 8) - (self.pos - p - 1))
        for r, p in self.valu_w.items():
            need = max(need, 2 - (self.pos - p - 1))
        for r, p in self.valu_sw.items():
            need = max(need, 5 - (self.pos - p - 1))
        for r, p in self.store_data.items():
            need = max(need, 2 - (self.pos - p - 1))
        for r, (p, dm) in self.dot_w.items():
            need = max(need, 3 - (self.pos - p - 1))
        need = max(need, 1 - (self.pos - self.m0_w - 1))
        if need > 0:
            self.nop(need)

    def I(self, text, count=True):
        text = text.strip()
        body = text.split(';')[0].strip()
        parts = body.split(None, 1)
        mn = parts[0]
        rest = parts[1] if len(parts) > 1 else ''
        ops = []
        cur = ''
        depth = 0
        for ch in rest:
            if ch in '[(':
                depth += 1
            if ch in '])':
                depth -= 1
            if ch == ',' and depth == 0:
                ops.append(cur.strip())
                cur = ''
            else:
                cur += ch
        if cur.strip():
            ops.append(cur.strip())
        mods = ''
        if ops:
            last = ops[-1].split(None, 1)
            ops[-1] = last[0]
            mods = last[1] if len(last) > 1 else ''
        self.count[mn] = self.count.get(mn, 0) + 1

        is_mfma = mn.startswith('v_mfma')
        is_valu = mn.startswith('v_') and not is_mfma
        is_vmem = mn.startswith('buffer_') or mn.startswith('global_')
        is_ds = mn.startswith('ds_')
        is_salu = mn.startswith('s_')
        dst, src = [], []
        if is_mfma:
            dst = regs_of(ops[0])
            srcA, srcB, srcC = regs_of(ops[1]), regs_of(ops[2]), regs_of(ops[3])
            src = srcA + srcB + srcC
            passes = 8 if '32x32x16' in mn else 4
        elif is_valu:
            dst = regs_of(ops[0])
            k = 1
            if mn.startswith(('v_add_co', 'v_sub_co', 'v_addc_co', 'v_subb_co')):
                dst += regs_of(ops[1])
                k = 2
            for o in ops[k:]:
                src += regs_of(o)
            if 'permlane' in mn and 'swap' in mn:
                dst += regs_of(ops[1])
                src += regs_of(ops[0])
            if mn.startswith(('v_fmac', 'v_dot2c', 'v_pk_fmac')) or 'dpp' in mn or mn.startswith('v_writelane'):
                src += regs_of(ops[0])
            if mn.startswith('v_cndmask') and len(ops) == 3:
                src += [('s', 'vcc')]
        elif is_vmem:
            if 'load' in mn and ' lds' not in (' ' + mods):
                dst = regs_of(ops[0])
                for o in ops[1:]:
                    src += regs_of(o)
            else:
                for o in ops:
                    src += regs_of(o)
        elif is_ds:
            if mn.startswith('ds_read') or mn.startswith('ds_bpermute') or mn.startswith('ds_swizzle'):
                dst = regs_of(ops[0])
                for o in ops[1:]:
                    src += regs_of(o)
            else:
                for o in ops:
                    src += regs_of(o)
        elif is_salu:
            if mn.startswith(('s_cmp', 's_cbranch', 's_branch', 's_waitcnt', 's_barrier', 's_nop', 's_endpgm', 's_sleep',
                              's_setprio', 's_bitcmp')):
                for o in ops:
                    src += regs_of(o)
            else:
                dst = regs_of(ops[0]) if ops else []
                for o in ops[1:]:
                    src += regs_of(o)

        need = 0

        def req(p, n):
            nonlocal need
            need = max(need, n - (self.pos - p - 1))

        vec = lambda L: [r for r in L if r[0] in 'va']
        sca = lambda L: [r for r in L if r[0] == 's']
        if is_mfma:
            for r in src:
                if r in self.valu_w:
                    req(self.valu_w[r], 2)
            for r in srcA + srcB:
                if r in self.mfma_d:
                    p, ps, f, sz = self.mfma_d[r]
                    req(p, 12 if ps == 8 else 8)
            for r in srcC:
                if r in self.mfma_d:
                    p, ps, f, sz = self.mfma_d[r]
                    if not (ps == passes and f == srcC[0] and sz == len(srcC)):
                        req(p, 10 if ps == 8 else 6)
            for r in dst:
                if r in self.mfma_d and r not in srcC:
                    p, ps, f, sz = self.mfma_d[r]
                    req(p, 10 if ps == 8 else 6)
        else:
            for r in vec(src) + vec(dst):
                if r in self.mfma_d:
                    p, ps, f, sz = self.mfma_d[r]
                    req(p, 12 if ps == 8 else 8)
        for r in vec(src) + vec(dst):
            if r in self.dot_w:
                p, dm = self.dot_w[r]
                chain = (dm == mn and r in dst and src.count(r) == 1)
                if not chain:
                    req(p, 3)
        if is_valu:
            for r in vec(dst):
                if r in self.mfma_c:
                    p, ps = self.mfma_c[r]
                    req(p, 7 if ps == 8 else 3)
                if r in self.store_data:
                    req(self.store_data[r], 2)
            for r in sca(src):
                if r in self.valu_sw:
                    req(self.valu_sw[r], 4 if 'lane' in mn else 2)
            for r in vec(src):
                if r in self.trans_w:
                    req(self.trans_w[r], 1)
                if r in self.valu_w:
                    if mn.startswith(('v_readfirstlane', 'v_readlane')):
                        req(self.valu_w[r], 1)
                    if 'permlane' in mn or 'dpp' in mn or 'row_' in mods or 'quad_perm' in mods:
                        req(self.valu_w[r], 2)
        if is_vmem or is_ds:
            for r in sca(src):
                if r in self.valu_sw:
                    req(self.valu_sw[r], 5)
            for r in vec(src):
                if r in self.trans_w:
                    req(self.trans_w[r], 1)
            for r in vec(dst):
                if r in self.store_data:
                    req(self.store_data[r], 2)
                if r in self.mfma_c:
                    p, ps = self.mfma_c[r]
                    req(p, 7 if ps == 8 else 3)
            if is_vmem and ' lds' in (' ' + mods):
                req(self.m0_w, 1)
        if is_salu:
            for r in sca(src):
                if r in self.valu_sw:
                    req(self.valu_sw[r], 2)
        if need > 0:
            self.nop(need)

        self.lines.append("    " + text)
        p = self.pos
        if mn == 's_nop':
            self.pos += int(ops[0]) + 1
        else:
            self.pos += 1

        for r in dst:
            self.valu_w.pop(r, None)
            self.trans_w.pop(r, None)
            self.dot_w.pop(r, None)
            if not is_mfma:
                self.mfma_d.pop(r, None)
            self.valu_sw.pop(r, None)
        if is_mfma:
            for r in dst:
                self.mfma_d[r] = (p, passes, dst[0], len(dst))
            for r in srcC:
                self.mfma_c[r] = (p, passes)
        elif is_valu:
            for r in dst:
                if r[0] in 'va':
                    self.valu_w[r] = p
                    if mn.startswith('v_dot'):
                        self.dot_w[r] = (p, mn)
                    if mn.startswith(TRANS):
                        self.trans_w[r] = p
                else:
                    self.valu_sw[r] = p
        elif is_salu:
            if ('s', 'm0') in dst:
                self.m0_w = p
        if is_vmem and 'store' in mn and ('x4' in mn or 'x3' in mn):
            for r in regs_of(ops[0]):
                self.store_data[r] = p
        tok = None
        if mn == 's_barrier':
            self.bar_vm = self.vm_done
            self.bar_lg = self.lg_done
        if count and is_vmem and not mn.startswith(('buffer_wbl2', 'buffer_inv')):
            self.vm_issued += 1
            tok = ('vm', self.vm_issued)
            out = self.vm_issued - self.vm_done
            self.max_vm_out = max(self.max_vm_out, out)
            assert out <= 63, f"vmcnt overflow at: {text}"
        if is_ds:
            self.lg_issued += 1
            tok = ('lg', self.lg_issued)
        if is_salu and ops and ops[0].startswith('exec'):
            self.exec_full = (body == "s_mov_b64 exec, -1")
        if is_valu and self.hookq and not self.hook_off and self.exec_full:
            self.hook_cnt += 2 if mn.startswith(TRANS) else 1
            if self.hook_cnt >= self.hook_every:
                self.hook_cnt = 0
                self.hook_off += 1
                self.hookq.pop(0)()
                self.hook_off -= 1
        return tok

    def interleave(self, closures, every, first=0):
        assert not self.hookq
        self.hookq = list(closures)
        self.hook_every = every
        self.hook_cnt = every - first

    def interleave_end(self):
        q, self.hookq = self.hookq, []
        for c in q:
            c()

    def wait(self, *toks):
        vm = max([t[1] for t in toks if t and t[0] == 'vm'], default=0)
        lg = max([t[1] for t in toks if t and t[0] == 'lg'], default=0)
        s = []
        if vm > self.vm_done:
            s.append(f"vmcnt({self.vm_issued - vm})")
            self.vm_done = vm
        if lg > self.lg_done:
            n = self.lg_issued - lg
            if n > 15:
                n = 15
            s.append(f"lgkmcnt({n})")
            self.lg_done = self.lg_issued - n
        if s:
            self.I("s_waitcnt " + " ".join(s))

    def drain_vm(self, force=False):
        if force or self.vm_done < self.vm_issued:
            self.I("s_waitcnt vmcnt(0)")
        self.vm_done = self.vm_issued

    def drain_lg(self, force=False):
        if force or self.lg_done < self.lg_issued:
            self.I("s_waitcnt lgkmcnt(0)")
        self.lg_done = self.lg_issued

    def exec_mask(self, lo, hi):
        if lo == 0xffffffff and hi == 0xffffffff:
            self.I("s_mov_b64 exec, -1")
        else:
            self.I(f"s_mov_b32 exec_lo, 0x{lo:x}")
            self.I(f"s_mov_b32 exec_hi, 0x{hi:x}")

    def lds_dma(self, slots, tok):
        for s in slots:
            assert self.l_acc.get(s, 0) <= self.bar_lg, f"LDS WAR: DMA into slot {s} not behind a barrier that covers its last access"
            self.l_dma[s] = tok[1]

    def lds_read(self, slots, tok):
        for s in slots:
            assert self.l_dma.get(s, 0) <= self.bar_vm, f"LDS RAW: read of slot {s} before its DMA is covered"
            assert self.l_dsw.get(s, 0) <= self.bar_lg, f"LDS RAW: read of slot {s} before its DS write is covered"
            self.l_acc[s] = tok[1]

    def lds_write(self, slots, tok, first=True):
        for s in slots:
            assert self.l_dma.get(s, 0) <= self.bar_vm, f"LDS WAW: write to slot {s} while a DMA may be in flight"
            if first:
                assert self.l_acc.get(s, 0) <= self.bar_lg, f"LDS WAR: write to slot {s} not behind a barrier"
            self.l_acc[s] = tok[1]
            self.l_dsw[s] = tok[1]

    _STATE = ('pos', 'valu_w', 'trans_w', 'mfma_d', 'mfma_c', 'valu_sw', 'm0_w', 'store_data', 'dot_w',
              'vm_issued', 'vm_done', 'lg_issued', 'lg_done')

    def save(self):
        import copy
        return {k: copy.copy(getattr(self, k)) for k in self._STATE}

    def restore(self, st):
        import copy
        for k in self._STATE:
            setattr(self, k, copy.copy(st[k]))

    def dual(self, cond_sgpr, fn, tag):
        self.hook_off += 1
        self.I(f"s_cmp_eq_u32 {cond_sgpr}, 0")
        self.I(f"s_cbranch_scc1 {tag}_slow")
        st = self.save()
        fn('')
        self.flush_hazards()
        self.I(f"s_branch {tag}_join")
        self.restore(st)
        self.label(f"{tag}_slow")
        fn('sc1')
        self.flush_hazards()
        self.label(f"{tag}_join")
        self.hook_off -= 1

    def last_vm(self):
        return ('vm', self.vm_issued)

    def last_lg(self):
        return ('lg', self.lg_issued)

    def text(self):
        return "\n".join(self.lines) + "\n"
```

```python
from asmlib import *
from layout import *

OOB = 0x40000000


def ids(a, sg, sm, st):
    a.I(f"s_and_b32 {S(sg)}, s2, 7")
    a.I(f"s_lshl_b32 {S(sg)}, {S(sg)}, 1")
    a.I(f"s_lshr_b32 {S(st)}, s2, 7")
    a.I(f"s_add_u32 {S(sg)}, {S(sg)}, {S(st)}")
    a.I(f"s_lshr_b32 {S(sm)}, s2, 3")
    a.I(f"s_and_b32 {S(sm)}, {S(sm)}, 15")


def srd(a, d, ptr, nbytes):
    a.I(f"s_mov_b32 {S(d)}, {S(ptr)}")
    a.I(f"s_mov_b32 {S(d+1)}, {S(ptr+1)}")
    a.I(f"s_mov_b32 {S(d+2)}, {nbytes}")
    a.I(f"s_mov_b32 {S(d+3)}, 0x20000")


def kd(name, vgpr, accum, sgpr=102):
    return f"""
.amdhsa_kernel {name}
  .amdhsa_next_free_vgpr {vgpr}
  .amdhsa_next_free_sgpr {sgpr}
  .amdhsa_accum_offset {accum}
  .amdhsa_group_segment_fixed_size 0
  .amdhsa_kernarg_size 80
  .amdhsa_user_sgpr_count 2
  .amdhsa_user_sgpr_kernarg_segment_ptr 1
  .amdhsa_system_sgpr_workgroup_id_x 1
.end_amdhsa_kernel
"""


RING = 144
L_MISC = RING * 1024
L_CS1 = L_MISC
L_CS3 = L_CS1 + 512
L_KVA = L_CS3 + 768
L_STW = L_KVA + 3392
L_END = L_STW + 1024
assert L_END <= 163840
KVW_SLOT = 16
L_KVW = KVW_SLOT * 1024
W3_ORG = 48
LDS_BYTES = 163840
ZROW = 52

WS, OUT, WSZ = 4, 8, 44
sG, sM, sW, sHF, sSL, sLAY, sFAST, sSEQ = 12, 13, 14, 15, 16, 17, 18, 19
sW1, sW3, sW2, sW4 = 20, 21, 22, 23
sXA, sXD, sSTR, sSTW = 24, 25, 26, 27
sOW, sOA, sHW, sHA = 28, 29, 33, 34
sKVS, sFRE, sRFW, sRFP, sCFW, sCFP = 38, 39, 40, 41, 42, 43
sT0, sT1, sT2, sT3, sT4 = 48, 49, 50, 51, 55
sA, sB, sC = 52, 53, 54
sEX2, sEX4 = 56, 86
sLOG2E, sEPS6, sC0, sC1 = 60, 62, 64, 66
sMK, sMT, sMC = 68, 70, 90
sSPIN, sWV16 = 72, 73
sSTAMP = 74
sTM = 94
sMX = 92
DBG, SRC = 96, 76
sNON, sKVF = 3, 75
L_SA, L_SB3, L_SB2, L_SB4 = 96 * 1024, 112 * 1024, 128 * 1024, 132 * 1024

vL16, vLANE, vR1, vR2 = 0, 1, 2, 3
vRES = 4
vL16B, vXD2, vSTL, vKB = 14, 15, 16, 17
vKA = 18
vSTWW, vSTWR, vCSL, vCSR = 25, 26, 27, 28
vT16, vKAW, vPOLL, vONES = 29, 30, 31, 32
vPTX, vPTO, vPTH = 33, 34, 35
vC0 = 36
vPL = 38
vTMP = 41
W0 = 44

P4_EARLY = [0, 1, 3, 4, 6, 7, 9, 10]
P4_LATE = [2, 5, 8, 11]


def f2u(x):
    import struct
    return struct.unpack('<I', struct.pack('<f', x))[0]


def lmask(cs, gs):
    m = 0
    for g in gs:
        for c in cs:
            m |= 1 << (16 * g + c)
    return m & 0xffffffff, m >> 32


class Main:
    def __init__(self, a, name, cfg):
        self.a = a
        self.name = name
        self.cfg = cfg
        self.nlab = 0
        self.run = {}

    def lab(self, p):
        self.nlab += 1
        return f"{self.name}_{p}{self.nlab}"

    def stamp(self, idx):
        if self.cfg.get('stamps') not in (1, 2):
            return
        a = self.a
        a.I(f"{'s_memrealtime' if self.cfg['stamps'] == 2 else 's_memtime'} {S(sTM,2)}")
        a.drain_lg(force=True)
        a.I(f"v_mov_b32 {V(vTMP)}, {S(sTM)}")
        a.I(f"v_mov_b32 {V(vTMP+1)}, 0")
        a.I("s_mov_b64 exec, 1")
        a.I(f"buffer_store_dword {V(vTMP)}, {V(vTMP+1)}, {S(WS,4)}, {S(sSTAMP)} offen offset:{idx*4}", count=False)
        a.I("s_mov_b64 exec, -1")

    def ring_addr(self, slot):
        off = slot * 1024
        if off < 65536:
            return vL16, off
        if off < 131072:
            return vR1, off - 65536
        return vR2, off - 131072

    def load_at(self, reg, sbase, off, srun, voff=vL16, mod=""):
        a = self.a
        hi = off & ~4095
        so = sbase
        if hi:
            if self.run.get(srun) != (sbase, hi):
                a.I(f"s_add_u32 {S(srun)}, {S(sbase)}, {hi}")
                self.run[srun] = (sbase, hi)
            so = srun
        return a.I(f"buffer_load_dwordx4 {R(reg,4)}, {V(voff)}, {S(WS,4)}, {S(so)} offen offset:{off & 4095} {mod}")

    def dma_step(self, stream):
        a = self.a
        sbase, org, srd_ = (sW1, 0, WSZ) if stream == 'W1' else (sW3, W3_ORG, WS)
        out = []
        cur = []
        for q in range(4):
            def f(q=q):
                if q == 0:
                    assert self.dma_open is None, "interleaved DMA groups"
                    cur.append(self.pos[stream])
                    self.pos[stream] += 1
                j = cur[0]
                slot0 = (org + 16 * j) % RING
                if q == 0:
                    a.I(f"s_add_u32 {S(sC)}, {S(sbase)}, {j*16384}")
                    a.I(f"s_add_u32 m0, {S(sWV16)}, {slot0*1024}")
                self.dma_open = None if q == 3 else (stream, j)
                t = a.I(f"buffer_load_dwordx4 {V(vL16)}, {S(srd_,4)}, {S(sC)} offen offset:{q*1024} lds")
                a.lds_dma([slot0 + 4 * w + q for w in range(4)], t)
                self.steptok[(stream, j)] = t
                return t
            out.append(f)
        return out

    def draw(self, stream, n):
        a = self.a
        out = []
        if stream in ('W1', 'W3'):
            for _ in range(n):
                out += self.dma_step(stream)
        elif stream == 'W2':
            def f2():
                i = self.pos['W2']
                self.pos['W2'] += 1
                self.load_at(self.w2regs[i], sW2, i * 1024, sB)
            out = [f2] * n
        elif stream == 'W4':
            order = [5 * k + T for k in P4_EARLY + P4_LATE for T in range(5)]

            def f4():
                i = self.pos['W4']
                self.pos['W4'] += 1
                assert i < self.w4_limit(), ("W4 destination still live", i, self.where)
                self.load_at(self.w4seq[i], sW4, order[i] * 1024, sB)
            out = [f4] * n
        else:
            voff, sb, add = {'PTO': (vPTO, sOW, 0), 'PTH': (vPTH, sHW, 0), 'PTX': (vPTX, sXD, XP_SZ)}[stream]

            def f():
                if add:
                    a.I(f"s_add_u32 {S(sT1)}, {S(sb)}, {add}")
                a.I(f"buffer_load_dword {V(vTMP+2)}, {V(voff)}, {S(WS,4)}, {S(sT1 if add else sb)} offen sc1")
            out.append(f)
        return out

    def w4_limit(self):
        ph, f = self.where
        if ph < 3:
            return 17
        if f < 160:
            return 42
        return 50 + max(0, 2 * ((f - 160) // 4))

    def bg_now(self, loc):
        for (l, start, gap, stream, n) in self.cfg['bg']:
            if l == loc:
                for c in self.draw(stream, n):
                    c()

    def bg_list(self, loc):
        out = []
        for (l, start, gap, stream, n) in self.cfg['bg']:
            if l == loc:
                out += self.draw(stream, n)
        return out

    def bg_loop(self, loc):
        d = {}
        for (l, start, gap, stream, n) in self.cfg['bg']:
            if l == loc:
                for i, c in enumerate(self.draw(stream, n)):
                    d.setdefault(start + int(i * gap), []).append(c)
        return d

    def poll(self, sbase, starget, smask, plus=0):
        a = self.a
        L, D = self.lab("poll"), self.lab("pdone")
        if plus:
            a.I(f"s_add_u32 {S(sT0)}, {S(starget)}, {plus}")
            starget = sT0
        a.I(f"s_mov_b32 {S(sSPIN)}, 0x20000")
        a.I(f"s_mov_b64 exec, {smask}")
        a.flush_hazards()
        a.label(L)
        a.I(f"buffer_load_dword {V(vTMP)}, {V(vPOLL)}, {S(WS,4)}, {S(sbase)} offen sc1")
        a.drain_vm(force=True)
        a.I(f"v_subrev_u32 {V(vTMP+1)}, {S(starget)}, {V(vTMP)}")
        a.I(f"v_cmp_lt_u32 vcc, 15, {V(vTMP+1)}")
        a.I(f"s_cbranch_vccz {D}")
        a.I(f"s_sub_u32 {S(sSPIN)}, {S(sSPIN)}, 1")
        a.I(f"s_cbranch_scc0 {L}")
        a.I(f"s_branch {self.name}_end")
        a.label(D)
        a.I("s_mov_b64 exec, -1")

    def apoll_issue(self, sbase):
        return self.a.I(f"buffer_load_dword {V(vPL)}, {V(vPOLL)}, {S(WS,4)}, {S(sbase)} offen sc1")

    def apoll_check(self, tok, sbase, starget, smask, plus=0):
        a = self.a
        D = self.lab("adone")
        if plus:
            a.I(f"s_add_u32 {S(sT0)}, {S(starget)}, {plus}")
            starget = sT0
        a.wait(tok)
        a.I(f"v_subrev_u32 {V(vPL)}, {S(starget)}, {V(vPL)}")
        a.I(f"v_cmp_lt_u32 vcc, 15, {V(vPL)}")
        a.I(f"s_and_b64 vcc, vcc, {smask}")
        a.I(f"s_cbranch_scc0 {D}")
        st = a.save()
        self.poll(sbase, starget, smask)
        a.flush_hazards()
        a.restore(st)
        a.label(D)

    def publish_row(self, tok):
        a = self.a
        a.I(f"s_add_u32 {S(sSEQ)}, {S(sSEQ)}, 1")
        a.I(f"v_mov_b32 {V(vTMP)}, {S(sSEQ)}")
        a.I(f"v_mov_b32 {V(vTMP+1)}, 0")
        a.I("s_mov_b64 exec, 1")
        a.wait(tok)
        a.dual(S(sFAST), lambda mod: a.I(f"buffer_store_dword {V(vTMP)}, {V(vTMP+1)}, {S(WS,4)}, {S(sRFW)} offen {mod}"), self.lab("fl"))
        a.I("s_mov_b64 exec, -1")

    def stats_loads(self, off, dst):
        a = self.a
        if off:
            a.I(f"s_add_u32 {S(sT0)}, {S(sSTR)}, {off}")
        sb = sT0 if off else sSTR
        t = None
        for tt in range(2):
            for s in range(2):
                t = a.I(f"buffer_load_dwordx2 {V(dst+4*tt+2*s,2)}, {V(vSTL)}, {S(WS,4)}, {S(sb)} offen offset:{s*1024+tt*128} sc1")
        return t

    def stats_reduce(self, raw, tok):
        a = self.a
        s = [lambda: a.wait(tok)]
        I = lambda t: s.append(lambda: a.I(t))
        for r in (raw, raw + 4):
            I(f"v_pk_add_f32 {V(r,2)}, {V(r,2)}, {V(r+2,2)}")
        for ins in ("v_permlane16_swap_b32", "v_permlane32_swap_b32"):
            for r in (raw, raw + 4):
                I(f"v_mov_b32 {V(r+2)}, {V(r)}")
                I(f"v_mov_b32 {V(r+3)}, {V(r+1)}")
            for r in (raw, raw + 4):
                I(f"{ins} {V(r)}, {V(r+2)}")
                I(f"{ins} {V(r+1)}, {V(r+3)}")
            for r in (raw, raw + 4):
                I(f"v_add_f32 {V(r)}, {V(r)}, {V(r+2)}")
                I(f"v_add_f32 {V(r+1)}, {V(r+1)}, {V(r+3)}")
        for r in (raw, raw + 4):
            I(f"v_mul_f32 {V(r+3)}, 0x{f2u(1.0/640):x}, {V(r+1)}")
            I(f"v_mul_f32 {V(r+1)}, 0x{f2u(-1.0/640):x}, {V(r)}")
        for r in (raw, raw + 4):
            I(f"v_fma_f32 {V(r+3)}, -{V(r+1)}, {V(r+1)}, {V(r+3)}")
        for r in (raw, raw + 4):
            I(f"v_max_f32 {V(r+3)}, 0, {V(r+3)}")
        for r in (raw, raw + 4):
            I(f"v_add_f32 {V(r+3)}, 0x{f2u(1e-5):x}, {V(r+3)}")
        for r in (raw, raw + 4):
            I(f"v_rsq_f32 {V(r)}, {V(r+3)}")
        for r in (raw, raw + 4):
            I(f"v_mul_f32 {V(r+2)}, {V(r+3)}, {V(r)}")
        return s

    def ring_start(self, sAbase, stats_off, stats_dst, a_first, entry_label=None):
        a = self.a
        if entry_label:
            a.flush_hazards()
            a.label(entry_label)
        self.run = {}
        n0 = a.vm_issued
        self.atok = {}
        self.aload = []
        for ks in range(20):
            for tt in range(2):
                self.aload.append(lambda ks=ks, tt=tt: self.atok.__setitem__(
                    (ks, tt), self.load_at(('a', 8 * ks + 4 * tt), sAbase, ks * 1024, sA, vL16B if tt else vL16, "sc1")))
        for _ in range(2):
            self.aload.pop(0)()
        st_tok = self.stats_loads(stats_off, stats_dst)
        for _ in range(a_first - 2):
            self.aload.pop(0)()
        a.I(f"s_waitcnt vmcnt({a.vm_issued - n0})")
        a.vm_done = max(a.vm_done, n0)
        if entry_label:
            L = self.lab("bf")
            a.I(f"s_cmp_lg_u32 {S(sLAY)}, 0")
            a.I(f"s_cbranch_scc1 {L}")
            a.I(f"s_add_u32 {S(sT0)}, {S(sNON)}, 2")
            a.I(f"v_mov_b32 {V(vTMP)}, {S(sT0)}")
            a.I("s_mov_b32 exec_hi, 0")
            a.I(f"buffer_store_dword {V(vTMP)}, {V(vPL+1)}, {S(WS,4)}, {S(sCFW)} offen sc1", count=False)
            a.I("s_mov_b64 exec, -1")
            a.flush_hazards()
            a.label(L)
        a.I("s_barrier")
        return st_tok

    def ring_prime(self, org, f0, wbuf):
        for f in range(f0, f0 + self.cfg['L']):
            self.ring_rd(org, f, wbuf)

    def ring_rd(self, org, f, wbuf):
        a = self.a
        slot = (org + f) % RING
        v, off = self.ring_addr(slot)
        t = a.I(f"ds_read_b128 {V(wbuf + (f % self.cfg['L']) * 4, 4)}, {V(v)} offset:{off}")
        a.lds_read([slot], t)
        self.rtok[f] = t

    def ring_loop(self, stream, org, items, wbuf, fill, bars, f_end):
        a = self.a
        L, G = self.cfg['L'], self.cfg['G']
        f0 = items[0][0]
        for (f, ks, d0, w_is_a) in items:
            self.where = (1 if stream == 'W1' else 3, f)
            if (stream, f) in self.cfg.get('probe', {}):
                self.stamp(self.cfg['probe'][(stream, f)])
            toks = []
            if (f - f0) % G == 0:
                toks += [self.rtok[x] for x in range(f, min(f + G, items[-1][0] + 1))]
            toks += [self.atok[(ks, 0)], self.atok[(ks, 1)]]
            if f in bars:
                if bars[f] is not None:
                    toks.append(self.steptok[(stream, bars[f])])
                    assert self.dma_open != (stream, bars[f])
            a.wait(*toks)
            if f in bars:
                a.I("s_barrier")
            q = list(fill.pop(f, []))
            h = (len(q) + 1) // 2
            w = V(wbuf + (f % L) * 4, 4)
            for tt in range(2):
                x = A(8 * ks + 4 * tt, 4)
                d = V(d0 + 4 * tt, 4)
                c = d if ks else "0"
                if w_is_a:
                    a.I(f"v_mfma_f32_16x16x32_bf16 {d}, {w}, {x}, {c}")
                else:
                    a.I(f"v_mfma_f32_16x16x32_bf16 {d}, {x}, {w}, {c}")
                if tt == 1 and f + L < f_end:
                    self.ring_rd(org, f + L, wbuf)
                for cl in (q[:h] if tt == 0 else q[h:]):
                    cl()

    def spread(self, fill, closures, start, gap):
        for i, c in enumerate(closures):
            fill.setdefault(start + int(i * gap), []).append(c)

    def ksplit_begin(self, phases, aring, sAb, a_first):
        self.run = {}
        seq = [(ph, r, ks) for ph, kl in enumerate(phases) for r in range(4) for ks in kl]
        atok = {}

        def aload(i):
            ph, r, ks = seq[i]
            atok[i] = self.load_at(aring[i % len(aring)], sAb + r, ks * 1024, sA, vL16, "sc1")
        self.ks_ctx = (phases, aring, seq, atok, aload, a_first)
        return [lambda i=i: aload(i) for i in range(a_first)]

    def ksplit_gemm(self, wmap, sEX, ex0, recv, bg, mid=False):
        a = self.a
        acc = W0
        phases, aring, seq, atok, aload, na = self.ks_ctx
        nph0 = 4 * len(phases[0])
        rtoks = []
        last = len(phases) - 1
        exslot = lambda d, z: ex0[d] + z
        polled = not mid
        ptok = []
        for i, (ph, r, ks) in enumerate(seq):
            kl = phases[ph]
            kk = kl.index(ks)
            if ('K%d' % len(seq), i) in self.cfg.get('probe', {}):
                self.stamp(self.cfg['probe'][('K%d' % len(seq), i)])
            a.wait(atok[i])
            q = []
            if na < len(seq) and (polled or na < nph0):
                if na - len(aring) < i:
                    q.append(lambda n=na: aload(n))
                    na += 1
            elif na < len(seq) and i == self.cfg['p4_midpoll']:
                q.append(lambda: self.apoll_check(ptok[0], sRFP, sSEQ, S(sMK, 2)))
                polled = True
                for _ in range(self.cfg['p4_afirst2']):
                    assert na - len(aring) < i
                    q.append(lambda n=na: aload(n))
                    na += 1
            if mid and i == self.cfg['p4_midpoll'] - self.cfg['apoll_lead']:
                q.append(lambda: ptok.append(self.apoll_issue(sRFP)))
            q += bg.pop(i, [])
            if ph == last:
                if r > 0 and kk == 0:
                    q.append(lambda r=r: a.I(f"v_add_u32 {V(vTMP)}, {S(sEX + r - 1)}, {V(vL16)}"))
                if r > 0 and kk == 1:
                    for T in range(5):
                        def wr(r=r, T=T):
                            t = a.I(f"ds_write_b128 {V(vTMP)}, {V(acc + 20 * (r - 1) + 4 * T, 4)} offset:{T*1024}")
                            a.lds_write([exslot(d, 5 * (r - 1) + T) for d in range(4)], t)
                        q.append(wr)
                if r == 3 and kk == 2:
                    def bar():
                        a.drain_lg()
                        a.I("s_barrier")
                        a.I(f"v_add_u32 {V(vTMP)}, {S(sEX + 3)}, {V(vL16)}")
                    q.append(bar)
                if r == 3 and kk >= 3:
                    nleft = len(kl) - 3
                    lo = 15 * (kk - 3) // nleft if nleft <= 3 else min(15, 5 * (kk - 3))
                    hi = 15 * (kk - 2) // nleft if nleft <= 3 else min(15, 5 * (kk - 2))
                    for z in range(lo, hi):
                        def rd(z=z):
                            t = a.I(f"ds_read_b128 {V(recv + 4 * z, 4)}, {V(vTMP)} offset:{z*1024}")
                            a.lds_read([exslot(d, z) for d in range(4)], t)
                            rtoks.append(t)
                        q.append(rd)
            per = -(-len(q) // 5)
            x = R(aring[i % len(aring)], 4)
            for T in range(5):
                d = V(acc + 20 * r + 4 * T, 4)
                c = d if (ph or kk) else "0"
                a.I(f"v_mfma_f32_16x16x32_bf16 {d}, {R(wmap[ks * 5 + T], 4)}, {x}, {c}")
                for cl in q[:per]:
                    cl()
                q = q[per:]
        assert not bg and na == len(seq), (bg, na)
        a.wait(rtoks[9])
        for z in range(10):
            a.I(f"v_pk_add_f32 {V(recv+2*z,2)}, {V(recv+2*z,2)}, {V(recv+20+2*z,2)}")
        a.wait(rtoks[14])
        for z in range(10):
            a.I(f"v_pk_add_f32 {V(recv+2*z,2)}, {V(recv+2*z,2)}, {V(recv+40+2*z,2)}")

    def resid_epilogue(self, recv, last_capable, loc):
        a = self.a
        acc, t = W0 + 60, recv + 20
        if self.cfg.get(loc + '_bar'):
            a.I("s_barrier")
        for z in range(10):
            a.I(f"v_lshlrev_b32 {V(t+2*z)}, 16, {V(vRES+z)}")
            a.I(f"v_and_b32 {V(t+2*z+1)}, 0xffff0000, {V(vRES+z)}")
        for z in range(10):
            a.I(f"v_pk_add_f32 {V(recv+2*z,2)}, {V(recv+2*z,2)}, {V(t+2*z,2)}")
        for z in range(10):
            a.I(f"v_pk_add_f32 {V(recv+2*z,2)}, {V(recv+2*z,2)}, {V(acc+2*z,2)}")
        for z in range(10):
            a.I(f"v_cvt_pk_bf16_f32 {V(vRES+z)}, {V(recv+2*z)}, {V(recv+2*z+1)}")
        Lout = self.lab("out")
        if last_capable:
            a.I(f"s_cmp_lg_u32 {S(sLAY)}, 0")
            a.I(f"s_cbranch_scc1 {Lout}")
        st = a.save()

        def stores(mod):
            a.I(f"buffer_store_dwordx4 {V(vRES,4)}, {V(vL16)}, {S(WS,4)}, {S(sXD)} offen {mod}")
            a.I(f"buffer_store_dwordx4 {V(vRES+4,4)}, {V(vL16)}, {S(WS,4)}, {S(sXD)} offen offset:1024 {mod}")
            a.I(f"buffer_store_dwordx2 {V(vRES+8,2)}, {V(vXD2)}, {S(WS,4)}, {S(sXD)} offen offset:2048 {mod}")
        a.I(f"s_add_u32 {S(sXD)}, {S(sXD)}, {XP_SZ}")
        a.dual(S(sFAST), stores, self.lab("xs"))
        a.I(f"v_mov_b32 {V(t)}, 0")
        a.I(f"v_mov_b32 {V(t+1)}, 0")
        a.I(f"v_mov_b32 {V(t+2)}, 0")
        a.I(f"v_mov_b32 {V(t+3)}, 0")
        for z in range(10):
            a.I(f"v_dot2c_f32_bf16 {V(t+2*(z&1))}, {V(vRES+z)}, {V(vONES)}")
            a.I(f"v_dot2c_f32_bf16 {V(t+1+2*(z&1))}, {V(vRES+z)}, {V(vRES+z)}")
        a.I(f"s_add_u32 {S(sSTW)}, {S(sSTW)}, 0x20000")
        a.I(f"v_lshlrev_b32 {V(t+4)}, 3, {V(vLANE)}")
        a.I(f"v_pk_add_f32 {V(t,2)}, {V(t,2)}, {V(t+2,2)}")
        for ins in ("v_permlane16_swap_b32", "v_permlane32_swap_b32"):
            a.I(f"v_mov_b32 {V(t+2)}, {V(t)}")
            a.I(f"v_mov_b32 {V(t+3)}, {V(t+1)}")
            a.I(f"{ins} {V(t)}, {V(t+2)}")
            a.I(f"{ins} {V(t+1)}, {V(t+3)}")
            a.I(f"v_pk_add_f32 {V(t,2)}, {V(t,2)}, {V(t+2,2)}")
        a.I("s_mov_b64 exec, 0xffff")
        a.dual(S(sFAST), lambda mod: a.I(f"buffer_store_dwordx2 {V(t,2)}, {V(t+4)}, {S(WS,4)}, {S(sSTW)} offen {mod}"), self.lab("ss"))
        tok = a.last_vm()
        a.I("s_mov_b64 exec, -1")
        self.bg_now(loc + '0')
        self.publish_row(tok)
        self.bg_now(loc)
        return Lout, st

    def gen(self):
        a, name, cfg = self.a, self.name, self.cfg
        self.dma_open = None
        self.steptok = {}
        self.rtok = {}
        self.pos = {'W1': 0}
        self.w2regs = [('a', 160 + 4 * i) for i in range(24)] + [('v', 252)]
        self.w4seq = [('v', 184 + 4 * i) for i in range(17)] + [('v', 252)] + [('a', 160 + 4 * i) for i in range(24)] + \
                     [('v', 152 + 4 * i) for i in range(8)] + [('a', 4 * i) for i in range(10)]
        a.raw(f".globl {name}\n.p2align 8\n.type {name},@function\n{name}:")
        a.I("s_cmp_ge_u32 s2, 256")
        a.I(f"s_cbranch_scc1 {name}_end")
        if cfg.get('stamps'):
            a.I("s_memrealtime s[100:101]")
            a.I("s_memtime s[80:81]")
        a.I("s_load_dwordx16 s[56:71], s[0:1], 0")
        a.I("s_load_dwordx4 s[48:51], s[0:1], 64")
        a.I("s_memrealtime s[94:95]")
        ids(a, sG, sM, sT4)
        a.I(f"v_lshrrev_b32 {V(vTMP)}, 6, v0")
        a.I(f"v_lshlrev_b32 {V(vT16)}, 4, v0")
        a.I(f"v_readfirstlane_b32 {S(sW)}, {V(vTMP)}")
        a.I(f"v_mov_b32 {V(vTMP+2)}, v0")
        a.I(f"v_and_b32 {V(vLANE)}, 63, v0")
        a.I(f"v_lshlrev_b32 {V(vL16)}, 4, {V(vLANE)}")
        a.I(f"s_lshr_b32 {S(sHF)}, {S(sM)}, 3")
        a.I(f"s_and_b32 {S(sSL)}, {S(sM)}, 7")
        a.I(f"s_lshl_b32 {S(sWV16)}, {S(sW)}, 12")

        def lin(dst, terms, const):
            first = True
            for r, mul in terms:
                if first:
                    a.I(f"s_mul_i32 {S(dst)}, {S(r)}, {mul}")
                    first = False
                else:
                    a.I(f"s_mul_i32 {S(sT4)}, {S(r)}, {mul}")
                    a.I(f"s_add_u32 {S(dst)}, {S(dst)}, {S(sT4)}")
            if const:
                a.I(f"s_add_u32 {S(dst)}, {S(dst)}, {const}")
        t0, t1, t2, t3 = W0, W0 + 1, W0 + 2, W0 + 3
        j32, hh, t16, g4 = W0 + 4, W0 + 5, W0 + 6, W0 + 7
        tid, oob = vTMP + 2, W0 + 8
        rr, cc = W0 + 9, W0 + 10
        va = W0 + 12
        xr = W0 + 24
        a.I(f"v_and_b32 {V(j32)}, 31, {V(vLANE)}")
        a.I(f"v_lshrrev_b32 {V(hh)}, 5, {V(vLANE)}")
        a.I(f"v_and_b32 {V(t16)}, 15, {V(vLANE)}")
        a.I(f"v_lshrrev_b32 {V(g4)}, 4, {V(vLANE)}")
        a.I(f"v_mov_b32 {V(oob)}, 0x{OOB:x}")

        def chunk_addr(dst, cbase, per_row, magic, rowb, limit, seg=False):
            a.I(f"v_add_u32 {V(t0)}, {cbase}, {V(tid)}")
            a.I(f"v_mul_u32_u24 {V(t1)}, {magic}, {V(t0)}")
            a.I(f"v_lshrrev_b32 {V(t1)}, 16, {V(t1)}")
            a.I(f"v_mul_u32_u24 {V(t2)}, {per_row}, {V(t1)}")
            a.I(f"v_sub_u32 {V(t2)}, {V(t0)}, {V(t2)}")
            a.I(f"v_mul_u32_u24 {V(t1)}, {rowb}, {V(t1)}")
            a.I(f"v_lshl_add_u32 {V(dst)}, {V(t2)}, 4, {V(t1)}")
            if seg:
                a.I(f"v_add_u32 {V(t1)}, 1280, {V(dst)}")
                a.I(f"v_add_u32 {V(t3)}, {2560 - 80}, {V(dst)}")
                a.I(f"v_cmp_lt_u32 vcc, 4, {V(t2)}")
                a.I(f"v_cndmask_b32 {V(t1)}, {V(t1)}, {V(t3)}, vcc")
                a.I(f"v_subrev_u32 {V(t3)}, 160, {V(dst)}")
                a.I(f"v_cmp_lt_u32 vcc, 9, {V(t2)}")
                a.I(f"v_cndmask_b32 {V(dst)}, {V(t1)}, {V(t3)}, vcc")
            if cbase + 256 > limit:
                a.I(f"v_cmp_gt_u32 vcc, {limit}, {V(t0)}")
                a.I(f"v_cndmask_b32 {V(dst)}, {V(oob)}, {V(dst)}, vcc")
        for q in range(3):
            chunk_addr(va + q, 256 * q, 15, 4370, 3840, 600, seg=True)
        xt, xj, xs = W0 + 44, W0 + 45, W0 + 46
        a.I(f"v_and_b32 {V(xt)}, 7, {V(vLANE)}")
        a.I(f"v_lshrrev_b32 {V(xj)}, 3, {V(vLANE)}")
        a.I(f"v_mul_u32_u24 {V(xs)}, 1280, {V(xt)}")
        a.I(f"v_lshl_add_u32 {V(xs)}, {V(xj)}, 4, {V(xs)}")
        a.I(f"s_cmp_ge_u32 {S(sW)}, 2")
        a.I(f"s_cselect_b64 {S(sMX,2)}, -1, 0")
        a.I(f"v_cndmask_b32 {V(xs)}, {V(oob)}, {V(xs)}, {S(sMX,2)}")
        a.I(f"v_mul_u32_u24 {V(t0)}, 1280, {V(t16)}")
        a.I(f"v_lshl_add_u32 {V(W0+47)}, {V(g4)}, 4, {V(t0)}")
        a.I(f"v_lshl_add_u32 {V(W0+48)}, {V(g4)}, 3, {V(t0)}")
        lin(sA, [(sG, 40 * 3840), (sM, 80)], 0)
        lin(sB, [(sG, 128 * 1280), (sM, 8 * 1280), (sW, 640)], -1280 & 0xffffffff)
        lin(sC, [(sG, 128 * 1280), (sHF, 64 * 1280), (sW, 16 * 1280), (sSL, 160)], 0)
        a.I(f"s_lshl_b32 {S(sT4)}, {S(sW)}, 10")
        a.I(f"s_add_u32 m0, {S(sT4)}, {L_SA}")
        a.I("s_waitcnt lgkmcnt(0)")
        srd(a, SRC, 58, 640 * 1920 * 2)
        srd(a, WS, 50, WS_BYTES)
        srd(a, DBG, 48, 256)
        sa_slots = list(range(96, 108))
        for q in range(3):
            if q:
                a.I(f"s_add_u32 m0, m0, 4096")
            t = a.I(f"buffer_load_dwordx4 {V(va+q)}, {S(SRC,4)}, {S(sA)} offen lds")
            a.lds_dma(sa_slots, t)
        srd(a, SRC, 56, 2048 * 1280)
        for i in range(5):
            ta = a.I(f"buffer_load_dwordx4 {V(xr+4*i,4)}, {V(xs)}, {S(SRC,4)}, {S(sB)} offen offset:{i*128}")
        a.I(f"buffer_load_dwordx4 {V(vRES,4)}, {V(W0+47)}, {S(SRC,4)}, {S(sC)} offen")
        a.I(f"buffer_load_dwordx4 {V(vRES+4,4)}, {V(W0+47)}, {S(SRC,4)}, {S(sC)} offen offset:64")
        a.I(f"buffer_load_dwordx2 {V(vRES+8,2)}, {V(W0+48)}, {S(SRC,4)}, {S(sC)} offen offset:128")
        L = self.lab("nn")
        a.I(f"s_add_u32 {S(sT4)}, s2, {S(sW)}")
        a.I(f"s_cmp_lg_u32 {S(sT4)}, 0")
        a.I(f"s_cbranch_scc1 {L}")
        a.I(f"s_lshl_b32 {S(sT4)}, s94, 4")
        a.I(f"s_or_b32 {S(sT4)}, {S(sT4)}, 1")
        a.I(f"v_mov_b32 {V(t0)}, {S(sT4)}")
        a.I(f"v_mov_b32 {V(t1)}, 0")
        a.I("s_mov_b64 exec, 1")
        a.I(f"buffer_store_dword {V(t0)}, {V(t1)}, {S(DBG,4)}, 0 offen sc1", count=False)
        a.I("s_mov_b64 exec, -1")
        a.flush_hazards()
        a.label(L)
        for q in range(4):
            chunk_addr(va + 3 + q, 256 * q, 12, 5462, 3072, 960)
        chunk_addr(va + 7, 0, 10, 6554, 1280, 240)
        for q in range(2):
            chunk_addr(va + 8 + q, 256 * q, 10, 6554, 1280, 480)
        srd(a, OUT, 70, 2048 * 1280)
        srd(a, WSZ, 50, WS_BYTES)
        pW3, pWO, pWD = 82, 84, 88
        a.I(f"s_cmp_lt_u32 {S(sG)}, 8")
        a.I(f"s_cselect_b32 {S(pW3)}, s64, s66")
        a.I(f"s_cselect_b32 {S(pW3+1)}, s65, s67")
        a.I(f"s_mov_b64 {S(pWO,2)}, s[60:61]")
        a.I(f"s_mov_b64 {S(pWD,2)}, s[68:69]")
        ws_ = 0 if cfg.get('wsame') else 1
        lin(sW1, [(sM, 163840 * ws_), (sW, 4096)], W1P)
        lin(sXA, [(sG, 163840), (sW, 40960)], XP)
        lin(sSTR, [(sG, 8192), (sW, 256)], ST)
        lin(sW3, [(sM, 245760 * ws_), (sW, 4096)], W3P)
        lin(sW2, [(sSL, 102400 * ws_), (sW, 25600)], W2P)
        lin(sW4, [(sSL, 245760 * ws_), (sW, 61440)], W4P)
        lin(sXD, [(sG, 163840), (sHF, 81920), (sW, 20480), (sSL, 2560)], XP)
        lin(sSTW, [(sG, 8192), (sSL, 1024), (sHF, 512), (sW, 128)], ST)
        lin(sOW, [(sG, 163840), (sW, 40960), (sM, 1280)], OP)
        lin(sHW, [(sG, 393216), (sW, 98304), (sM, 3072)], HP)
        for r in range(4):
            a.I(f"s_add_u32 {S(sT0)}, {S(sW)}, {r+1}")
            a.I(f"s_and_b32 {S(sT0)}, {S(sT0)}, 3")
            lin(sOA + r, [(sG, 163840), (sHF, 81920), (sT0, 20480), (sW, 5120)], OP)
            lin(sHA + r, [(sG, 393216), (sHF, 196608), (sT0, 49152), (sW, 12288)], HP)
            ro = r * 5120 if r < 3 else 0
            lin(sEX2 + r, [(sT0, 16384)], ro)
            a.I(f"s_cmp_eq_u32 {S(sT0)}, 3")
            a.I(f"s_cselect_b32 {S(sEX2+r)}, {128 * 1024 + ro}, {S(sEX2+r)}")
        lin(sKVS, [(sM, 4096)], KVS)
        lin(sRFW, [(sG, 256), (sM, 16), (sW, 4)], F_ROW)
        lin(sRFP, [(sG, 256)], F_ROW)
        lin(sCFW, [(sG, 16), (sW, 4)], F_COL)
        lin(sCFP, [(sM, 8192), (sG, 512)], F_COL)
        a.I(f"s_xor_b32 {S(sT0)}, {S(sM)}, 8")
        a.I(f"s_lshl_b32 {S(sT0)}, {S(sT0)}, 13")
        a.I(f"s_add_u32 {S(sT0)}, {S(sT0)}, 256")
        a.I(f"s_lshl_b32 {S(sT1)}, {S(sM)}, 13")
        a.I(f"v_mov_b32 {V(t0)}, {S(sT0)}")
        a.I(f"v_mov_b32 {V(t1)}, {S(sT1)}")
        a.I(f"v_cmp_gt_u32 vcc, 16, {V(vLANE)}")
        a.I(f"v_cndmask_b32 {V(t0)}, {V(t0)}, {V(t1)}, vcc")
        a.I(f"v_lshl_add_u32 {V(vPL+1)}, {V(t16)}, 9, {V(t0)}")
        a.I(f"s_lshl_b32 {S(sT0)}, {S(sHF)}, 1")
        a.I(f"s_lshl_b32 {S(sT1)}, {S(sW)}, 4")
        a.I(f"s_mov_b64 {S(sMC,2)}, 0xffff")
        a.I(f"s_lshl_b64 {S(sMC,2)}, {S(sMC,2)}, {S(sT1)}")
        a.I(f"s_add_u32 {S(sT0)}, {S(sT0)}, {S(sT1)}")
        a.I(f"s_mov_b64 {S(sMK,2)}, 0x3333")
        a.I(f"s_lshl_b64 {S(sMK,2)}, {S(sMK,2)}, {S(sT0)}")
        a.I(f"s_and_b32 {S(sT0)}, {S(sW)}, 1")
        a.I(f"s_lshl_b32 {S(sT0)}, {S(sT0)}, 1")
        a.I(f"s_lshr_b32 {S(sT1)}, {S(sW)}, 1")
        a.I(f"s_lshl_b32 {S(sT1)}, {S(sT1)}, 5")
        a.I(f"s_add_u32 {S(sT0)}, {S(sT0)}, {S(sT1)}")
        a.I(f"s_mov_b64 {S(sMT,2)}, 0x33333333")
        a.I(f"s_lshl_b64 {S(sMT,2)}, {S(sMT,2)}, {S(sT0)}")
        a.I(f"s_lshl_b32 {S(sSTAMP)}, s2, 11")
        a.I(f"s_lshl_b32 {S(sT0)}, {S(sW)}, 9")
        a.I(f"s_add_u32 {S(sSTAMP)}, {S(sSTAMP)}, {S(sT0)}")
        a.I(f"s_add_u32 {S(sSTAMP)}, {S(sSTAMP)}, {STAMP}")
        a.I(f"s_mov_b32 {S(sLAY)}, 0")
        a.I(f"s_mov_b32 {S(sFAST)}, 0")
        c0 = -2.0 * 1.4426950408889634 * 0.7978845608028654
        for r, val in ((sLOG2E, 1.4426950408889634), (sEPS6, 1e-6), (sC1, c0 * 0.044715)):
            a.I(f"s_mov_b32 {S(r)}, 0x{f2u(val):x}")
            a.I(f"s_mov_b32 {S(r+1)}, 0x{f2u(val):x}")
        a.I(f"v_mov_b32 {V(vC0)}, 0x{f2u(c0):x}")
        a.I(f"v_mul_u32_u24 {V(t0)}, 205, {V(tid)}")
        a.I(f"v_lshrrev_b32 {V(t0)}, 10, {V(t0)}")
        a.I(f"v_mul_u32_u24 {V(t1)}, 5, {V(t0)}")
        a.I(f"v_sub_u32 {V(t1)}, {V(tid)}, {V(t1)}")
        a.I(f"v_cmp_lt_u32 vcc, 20, {V(t0)}")
        a.I(f"v_cndmask_b32 {V(t2)}, 8, 24, vcc")
        a.I(f"v_cmp_eq_u32 vcc, 4, {V(t1)}")
        a.I(f"v_lshlrev_b32 {V(t1)}, 4, {V(t1)}")
        a.I(f"v_cndmask_b32 {V(t1)}, {V(t1)}, {V(t2)}, vcc")
        a.I(f"v_lshl_add_u32 {V(vKAW)}, {V(t0)}, 6, {V(t1)}")
        a.I(f"v_add_u32 {V(vKAW)}, {L_KVA}, {V(vKAW)}")
        a.I(f"v_add_u32 {V(vR1)}, 0x10000, {V(vL16)}")
        a.I(f"v_add_u32 {V(vR2)}, 0x20000, {V(vL16)}")
        a.I(f"v_add_u32 {V(vL16B)}, 20480, {V(vL16)}")
        a.I(f"v_lshlrev_b32 {V(t0)}, 4, {V(t16)}")
        a.I(f"v_lshl_add_u32 {V(vXD2)}, {V(hh)}, 8, {V(t0)}")
        a.I(f"v_and_b32 {V(t1)}, 1, {V(g4)}")
        a.I(f"v_lshl_add_u32 {V(vXD2)}, {V(t1)}, 3, {V(vXD2)}")
        a.I(f"v_lshlrev_b32 {V(vSTL)}, 3, {V(t16)}")
        a.I(f"v_lshl_add_u32 {V(vSTL)}, {V(g4)}, 11, {V(vSTL)}")
        a.I(f"s_mul_i32 {S(sT0)}, {S(sW)}, 3360")
        a.I(f"s_add_u32 {S(sT0)}, {S(sT0)}, {L_KVW - 640}")
        a.I(f"v_lshlrev_b32 {V(t3)}, 4, {V(g4)}")
        a.I(f"v_mul_u32_u24 {V(t0)}, 80, {V(t16)}")
        a.I(f"v_add3_u32 {V(vKB)}, {V(t0)}, {V(t3)}, {S(sT0)}")
        a.I(f"v_and_b32 {V(t0)}, 12, {V(t16)}")
        a.I(f"v_add_u32 {V(t0)}, {V(t0)}, {V(t16)}")
        for k in range(2):
            if k:
                a.I(f"v_add_u32 {V(t0)}, 4, {V(t0)}")
            a.I(f"v_add_u32 {V(t1)}, 1, {V(t0)}")
            a.I(f"v_cmp_gt_u32 vcc, 20, {V(t0)}")
            a.I(f"v_cndmask_b32 {V(vKA+2*k)}, {ZROW}, {V(t0)}, vcc")
            a.I(f"v_cndmask_b32 {V(vKA+2*k+1)}, {V(t1)}, {ZROW}, vcc")
        a.I(f"v_add_u32 {V(t1)}, 33, {V(t16)}")
        a.I(f"v_cmp_gt_u32 vcc, 8, {V(t16)}")
        a.I(f"v_cndmask_b32 {V(vKA+4)}, {ZROW}, {V(t1)}, vcc")
        a.I(f"v_and_b32 {V(cc)}, 3, {V(t16)}")
        a.I(f"v_lshrrev_b32 {V(rr)}, 2, {V(t16)}")
        a.I(f"v_cmp_eq_u32 vcc, 0, {V(cc)}")
        a.I(f"v_cndmask_b32 {V(vKA+5)}, {ZROW}, 20, vcc")
        a.I(f"v_cmp_eq_u32 vcc, 1, {V(cc)}")
        a.I(f"v_cndmask_b32 {V(vKA+6)}, {ZROW}, 41, vcc")
        a.I(f"v_add_u32 {V(t1)}, {L_KVA}, {V(t3)}")
        for k in range(7):
            a.I(f"v_lshl_add_u32 {V(vKA+k)}, {V(vKA+k)}, 6, {V(t1)}")
        a.I(f"s_lshl_b32 {S(sT0)}, {S(sW)}, 8")
        a.I(f"s_add_u32 {S(sT0)}, {S(sT0)}, {L_STW}")
        a.I(f"v_lshlrev_b32 {V(vPOLL)}, 2, {V(vLANE)}")
        a.I(f"v_add_u32 {V(vSTWW)}, {S(sT0)}, {V(vPOLL)}")
        a.I(f"v_add_u32 {V(vSTWR)}, {S(sT0)}, {V(t3)}")
        a.I(f"v_add_u32 {V(vCSR)}, {L_CS1}, {V(t3)}")
        a.I(f"v_lshlrev_b32 {V(vCSL)}, 2, {V(t16)}")
        a.I(f"v_add_u32 {V(vCSL)}, {L_CS1}, {V(vCSL)}")
        a.I(f"v_mov_b32 {V(vONES)}, 0x3f803f80")
        a.I(f"v_lshlrev_b32 {V(t0)}, 7, {V(j32)}")
        a.I(f"v_cmp_gt_u32 vcc, 20, {V(vLANE)}")
        a.I(f"v_cndmask_b32 {V(vPTX)}, {V(oob)}, {V(t0)}, vcc")
        a.I(f"v_mul_u32_u24 {V(t1)}, 20480, {V(hh)}")
        a.I(f"v_add_u32 {V(vPTO)}, {V(t0)}, {V(t1)}")
        a.I(f"v_cmp_gt_u32 vcc, 10, {V(j32)}")
        a.I(f"v_cndmask_b32 {V(vPTO)}, {V(oob)}, {V(vPTO)}, vcc")
        a.I(f"v_mul_u32_u24 {V(t1)}, 49152, {V(hh)}")
        a.I(f"v_add_u32 {V(vPTH)}, {V(t0)}, {V(t1)}")
        a.I(f"v_cmp_gt_u32 vcc, 24, {V(j32)}")
        a.I(f"v_cndmask_b32 {V(vPTH)}, {V(oob)}, {V(vPTH)}, vcc")
        zr = W0 + 52
        for q in range(4):
            a.I(f"v_mov_b32 {V(zr+q)}, 0")
        a.I(f"v_add_u32 {V(t0)}, {L_KVA}, {V(vT16)}")
        a.I(f"v_cmp_gt_u32 vcc, 3392, {V(vT16)}")
        a.I("s_mov_b64 exec, vcc")
        a.I(f"ds_write_b128 {V(t0)}, {V(zr,4)}")
        a.I("s_mov_b64 exec, -1")
        ra, da, ds_, csum = W0 + 56, W0 + 57, W0 + 58, W0 + 59
        a.I(f"s_and_b32 {S(sT0)}, {S(sW)}, 1")
        a.I(f"s_lshl_b32 {S(sT0)}, {S(sT0)}, 2")
        a.I(f"v_add_u32 {V(t0)}, {S(sT0)}, {V(g4)}")
        a.I(f"v_lshlrev_b32 {V(t1)}, 2, {V(cc)}")
        a.I(f"v_lshl_add_u32 {V(t2)}, {V(t0)}, 4, {V(t1)}")
        a.I(f"v_add_u32 {V(t3)}, 100, {V(t1)}")
        a.I(f"v_cmp_eq_u32 vcc, 6, {V(t0)}")
        a.I(f"v_cndmask_b32 {V(t2)}, {V(t2)}, {V(t3)}, vcc")
        a.I(f"v_mul_u32_u24 {V(t3)}, 20, {V(cc)}")
        a.I(f"v_min_u32 {V(t3)}, 20, {V(t3)}")
        a.I(f"v_add_u32 {V(t3)}, 96, {V(t3)}")
        a.I(f"v_cmp_eq_u32 vcc, 7, {V(t0)}")
        a.I(f"v_cndmask_b32 {V(t2)}, {V(t2)}, {V(t3)}, vcc")
        a.I(f"v_mul_u32_u24 {V(t3)}, 240, {V(rr)}")
        a.I(f"v_lshl_add_u32 {V(ra)}, {V(t2)}, 1, {V(t3)}")
        a.I(f"v_add_u32 {V(ra)}, {L_SA}, {V(ra)}")
        a.I(f"v_add_u32 {V(t1)}, 95, {V(t0)}")
        a.I(f"v_cmp_gt_u32 vcc, 5, {V(t0)}")
        a.I(f"v_cndmask_b32 {V(t1)}, {V(t1)}, {V(t0)}, vcc")
        a.I(f"v_cndmask_b32 {V(ds_)}, 3, 5, vcc")
        a.I(f"v_lshlrev_b32 {V(ds_)}, 10, {V(ds_)}")
        a.I(f"v_lshlrev_b32 {V(t2)}, 4, {V(t16)}")
        a.I(f"v_lshl_add_u32 {V(da)}, {V(t1)}, 10, {V(t2)}")
        a.I(f"s_cmp_eq_u32 {S(sW)}, 1")
        a.I(f"s_cselect_b32 {S(sMX+1)}, 0xff000000, 0")
        a.I(f"s_mov_b32 {S(sMX)}, 0")
        a.I(f"v_mov_b32 {V(csum)}, 0")
        nt = a.I(f"buffer_load_dword {V(vPL)}, {V(zr)}, {S(DBG,4)}, 0 offen sc1")
        a.wait(ta)
        self.stamp(44)
        a.drain_lg()
        a.I("s_barrier")
        LX, LJ = self.lab("px"), self.lab("pj")
        a.I(f"s_cmp_ge_u32 {S(sW)}, 2")
        a.I(f"s_cbranch_scc1 {LX}")
        st = a.save()
        for kg in range(5):
            for u in range(2):
                t = a.I(f"ds_read_b64_tr_b16 {V(xr+4*kg+2*u,2)}, {V(ra)} offset:{kg*1920+u*960}")
                a.lds_read(sa_slots, t)
        lin(sA, [(sM, 163840)], W1P)
        a.I(f"s_mul_i32 {S(sB)}, {S(sG)}, 5")
        a.drain_lg()
        for kg in range(5):
            a.I(f"s_lshr_b32 {S(sT0)}, {S(sB)}, 2")
            a.I(f"s_and_b32 {S(sT1)}, {S(sB)}, 3")
            a.I(f"s_lshl_b32 {S(sT1)}, {S(sT1)}, 8")
            a.I(f"s_add_u32 {S(sT1)}, {S(sT1)}, {S(sA)}")
            a.I(f"v_mad_u32_u24 {V(t0+(kg&1))}, {V(ds_)}, {S(sT0)}, {V(da)}")
            for u in range(4):
                a.I(f"v_cndmask_b32 {V(xr+4*kg+u)}, {V(xr+4*kg+u)}, {V(zr)}, {S(sMX,2)}")
            a.I(f"buffer_store_dwordx4 {V(xr+4*kg,4)}, {V(t0+(kg&1))}, {S(WS,4)}, {S(sT1)} offen sc1")
            for u in range(4):
                a.I(f"v_dot2c_f32_bf16 {V(csum)}, {V(xr+4*kg+u)}, {V(vONES)}")
            a.I(f"s_add_u32 {S(sB)}, {S(sB)}, 1")
        lin(sT0, [(sM, 8192), (sG, 512), (sW, 256)], CS1)
        a.I(f"buffer_store_dword {V(csum)}, {V(vPOLL)}, {S(WS,4)}, {S(sT0)} offen sc1")
        a.flush_hazards()
        a.I(f"s_branch {LJ}")
        lg_keep = (a.lg_issued, a.lg_done)
        a.restore(st)
        a.label(LX)
        a.I(f"s_lshr_b32 {S(sT0)}, {S(sM)}, 1")
        a.I(f"s_and_b32 {S(sT1)}, {S(sM)}, 1")
        lin(sA, [(sG, 163840), (sT0, 20480), (sT1, 128), (sW, 10240)], XP - 20480)
        a.I(f"v_lshlrev_b32 {V(t0)}, 4, {V(xt)}")
        a.I(f"v_lshl_add_u32 {V(t0)}, {V(xj)}, 8, {V(t0)}")
        a.I(f"v_mov_b32 {V(t2)}, 0")
        a.I(f"v_mov_b32 {V(t3)}, 0")
        for i in range(5):
            a.I(f"buffer_store_dwordx4 {V(xr+4*i,4)}, {V(t0)}, {S(WS,4)}, {S(sA)} offen offset:{(i&1)*2048} sc1")
            if i & 1:
                a.I(f"s_add_u32 {S(sA)}, {S(sA)}, 4096")
            for q in range(4):
                a.I(f"v_dot2c_f32_bf16 {V(t2)}, {V(xr+4*i+q)}, {V(vONES)}")
                a.I(f"v_dot2c_f32_bf16 {V(t3)}, {V(xr+4*i+q)}, {V(xr+4*i+q)}")
        L = self.lab("kz")
        a.I(f"s_cmp_ge_u32 {S(sG)}, 2")
        a.I(f"s_cbranch_scc1 {L}")
        lin(sT0, [(sG, 0x10000), (sM, 4096), (sW, 2048)], KVS - 4096)
        a.I(f"buffer_store_dwordx4 {V(zr,4)}, {V(vL16)}, {S(WS,4)}, {S(sT0)} offen sc1")
        a.I(f"buffer_store_dwordx4 {V(zr,4)}, {V(vL16)}, {S(WS,4)}, {S(sT0)} offen offset:1024 sc1")
        a.flush_hazards()
        a.label(L)
        for r in (t2, t3):
            a.I(f"v_add_f32_dpp {V(r)}, {V(r)}, {V(r)} row_ror:8 row_mask:0xf bank_mask:0xf")
        for ins in ("v_permlane16_swap_b32", "v_permlane32_swap_b32"):
            a.I(f"v_mov_b32 {V(t0)}, {V(t2)}")
            a.I(f"v_mov_b32 {V(t1)}, {V(t3)}")
            a.I(f"{ins} {V(t2)}, {V(t0)}")
            a.I(f"{ins} {V(t3)}, {V(t1)}")
            a.I(f"v_pk_add_f32 {V(t2,2)}, {V(t2,2)}, {V(t0,2)}")
        a.I(f"s_mul_i32 {S(sT0)}, {S(sW)}, 3")
        a.I(f"s_sub_u32 {S(sT0)}, {S(sT0)}, 5")
        a.I(f"s_sub_u32 {S(sT1)}, {S(sW)}, 2")
        a.I(f"v_add_u32 {V(t0)}, {S(sT0)}, {V(xj)}")
        a.I(f"v_mov_b32 {V(t1)}, {S(sT1)}")
        a.I(f"v_cmp_eq_u32 vcc, 0, {V(xj)}")
        a.I(f"v_cndmask_b32 {V(t0)}, {V(t0)}, {V(t1)}, vcc")
        a.I(f"v_cndmask_b32 {V(t2)}, 0, {V(t2)}, vcc")
        a.I(f"v_cndmask_b32 {V(t3)}, 0, {V(t3)}, vcc")
        a.I(f"v_lshlrev_b32 {V(t1)}, 3, {V(xt)}")
        a.I(f"v_lshl_add_u32 {V(t0)}, {V(t0)}, 10, {V(t1)}")
        lin(sT0, [(sG, 8192), (sM, 64)], ST)
        a.I("s_mov_b32 exec_hi, 0")
        a.I(f"buffer_store_dwordx2 {V(t2,2)}, {V(t0)}, {S(WS,4)}, {S(sT0)} offen sc1")
        a.I("s_mov_b64 exec, -1")
        a.flush_hazards()
        a.label(LJ)
        a.lg_issued, a.lg_done = lg_keep
        a.vm_issued += 16
        sa_tok = a.last_vm()
        a.I(f"s_and_b32 {S(sT2)}, {S(sG)}, 7")
        lin(sA, [(sT2, 80 * 3072), (sM, 192)], 0)
        srd(a, SRC, pW3, 640 * 1536 * 2)
        a.I(f"s_lshl_b32 {S(sT4)}, {S(sW)}, 10")
        a.I(f"s_add_u32 m0, {S(sT4)}, {L_SB3}")
        sb_slots = list(range(112, 140))
        for q in range(4):
            if q:
                a.I(f"s_add_u32 m0, m0, 4096")
            a.lds_dma(sb_slots, a.I(f"buffer_load_dwordx4 {V(va+3+q)}, {S(SRC,4)}, {S(sA)} offen lds"))
        sY, sK2 = sT3, sFRE
        a.I(f"s_lshl_b32 {S(sY)}, {S(sHF)}, 4")
        a.I(f"s_add_u32 {S(sY)}, {S(sY)}, {S(sG)}")
        a.I(f"s_mul_i32 {S(sK2)}, {S(sY)}, 5")
        a.I(f"s_lshr_b32 {S(sK2)}, {S(sK2)}, 1")
        lin(sA, [(sK2, 8 * 1280), (sSL, 160)], 0)
        srd(a, SRC, pWO, 640 * 1280)
        a.I(f"s_add_u32 m0, m0, 4096")
        a.lds_dma(sb_slots, a.I(f"buffer_load_dwordx4 {V(va+7)}, {S(SRC,4)}, {S(sA)} offen lds"))
        lin(sA, [(sY, 48 * 1280), (sSL, 160)], 0)
        srd(a, SRC, pWD, 1536 * 1280)
        for q in range(2):
            a.I(f"s_add_u32 m0, m0, 4096")
            a.lds_dma(sb_slots, a.I(f"buffer_load_dwordx4 {V(va+8+q)}, {S(SRC,4)}, {S(sA)} offen lds"))
        for r in range(4):
            a.I(f"s_add_u32 {S(sT0)}, {S(sW)}, {r+1}")
            a.I(f"s_and_b32 {S(sT0)}, {S(sT0)}, 3")
            lin(sEX4 + r, [(sT0, 16384)], 80 * 1024 + (r * 5120 if r < 3 else 0))
        a.wait(sa_tok)
        self.stamp(45)
        LN, LD = self.lab("tg"), self.lab("tgd")
        a.I(f"s_mov_b32 {S(sSPIN)}, 0x20000")
        a.flush_hazards()
        a.label(LN)
        a.I(f"v_readfirstlane_b32 {S(sNON)}, {V(vPL)}")
        a.I(f"s_bitcmp1_b32 {S(sNON)}, 0")
        a.I(f"s_cbranch_scc1 {LD}")
        a.I(f"buffer_load_dword {V(vPL)}, {V(zr)}, {S(DBG,4)}, 0 offen sc1", count=False)
        a.I("s_waitcnt vmcnt(0)")
        a.I(f"s_sub_u32 {S(sSPIN)}, {S(sSPIN)}, 1")
        a.I(f"s_cbranch_scc0 {LN}")
        a.I(f"s_branch {name}_end")
        a.label(LD)
        a.I(f"s_sub_u32 {S(sNON)}, {S(sNON)}, 1")
        a.I(f"s_add_u32 {S(sSEQ)}, {S(sNON)}, 1")
        a.I(f"s_add_u32 {S(sKVF)}, {S(sNON)}, 3")
        a.I(f"v_mov_b32 {V(t0)}, {S(sSEQ)}")
        a.I("s_mov_b64 exec, 0xffff")
        a.I(f"buffer_store_dword {V(t0)}, {V(vPL+1)}, {S(WS,4)}, {S(sCFW)} offen sc1")
        a.I("s_mov_b64 exec, 1")
        a.I(f"buffer_store_dword {V(t0)}, {V(zr)}, {S(WS,4)}, {S(sRFW)} offen sc1")
        a.I(f"s_getreg_b32 {S(sT2)}, hwreg(HW_REG_XCC_ID, 0, 4)")
        a.I(f"s_and_b32 {S(sT2)}, {S(sT2)}, 7")
        a.I(f"s_add_u32 {S(sT2)}, {S(sT2)}, {S(sSEQ)}")
        a.I(f"v_mov_b32 {V(t1)}, {S(sT2)}")
        lin(sT0, [(sG, 128), (sM, 4)], F_XCC)
        a.I(f"buffer_store_dword {V(t1)}, {V(zr)}, {S(WS,4)}, {S(sT0)} offen sc1")
        a.I("s_mov_b64 exec, -1")
        r3, r2, r4, d3, d2, d4a, d4b = (W0 + 60 + i for i in range(7))
        a.I(f"v_and_b32 {V(t0)}, 1, {V(g4)}")
        a.I(f"v_lshl_add_u32 {V(t0)}, {V(t0)}, 3, {V(rr)}")
        a.I(f"v_mul_u32_u24 {V(t0)}, 192, {V(t0)}")
        a.I(f"v_lshl_add_u32 {V(t0)}, {V(cc)}, 4, {V(t0)}")
        a.I(f"v_lshl_add_u32 {V(t0)}, {V(hh)}, 3, {V(t0)}")
        a.I(f"s_lshl_b32 {S(sT0)}, {S(sW)}, 6")
        a.I(f"s_add_u32 {S(sT0)}, {S(sT0)}, {L_SB3}")
        a.I(f"v_add_u32 {V(r3)}, {S(sT0)}, {V(t0)}")
        a.I(f"v_lshlrev_b32 {V(t0)}, 4, {V(j32)}")
        a.I(f"v_lshl_add_u32 {V(d3)}, {V(hh)}, 10, {V(t0)}")
        a.I(f"v_mul_u32_u24 {V(t0)}, 160, {V(rr)}")
        a.I(f"v_lshl_add_u32 {V(t1)}, {V(cc)}, 4, {V(t0)}")
        a.I(f"v_lshl_add_u32 {V(t1)}, {V(hh)}, 6, {V(t1)}")
        a.I(f"v_and_b32 {V(t2)}, 1, {V(g4)}")
        a.I(f"v_lshl_add_u32 {V(r2)}, {V(t2)}, 3, {V(t1)}")
        a.I(f"v_lshl_add_u32 {V(t0)}, {V(cc)}, 3, {V(t0)}")
        a.I(f"v_mul_u32_u24 {V(t1)}, 1280, {V(g4)}")
        a.I(f"v_add3_u32 {V(r4)}, {V(t0)}, {V(t1)}, 64")
        a.I(f"v_add_u32 {V(r4)}, 64, {V(r4)}")
        a.I(f"v_lshlrev_b32 {V(t0)}, 4, {V(t16)}")
        a.I(f"v_lshl_add_u32 {V(d2)}, {V(g4)}, 10, {V(t0)}")

        def tile4_dest(dst, skg, add, nvalid):
            a.I(f"s_add_u32 {S(sT0)}, {S(skg)}, {add}")
            a.I(f"v_add_u32 {V(t1)}, {S(sT0)}, {V(g4)}")
            a.I(f"v_lshrrev_b32 {V(t2)}, 2, {V(t1)}")
            a.I(f"v_and_b32 {V(t1)}, 3, {V(t1)}")
            a.I(f"v_mul_u32_u24 {V(t2)}, 5120, {V(t2)}")
            a.I(f"v_lshl_add_u32 {V(t1)}, {V(t1)}, 8, {V(t2)}")
            a.I(f"v_add3_u32 {V(dst)}, {V(t1)}, {V(t0)}, {S(sT1)}")
            if nvalid < 4:
                a.I(f"v_cmp_gt_u32 vcc, {nvalid}, {V(g4)}")
                a.I(f"v_cndmask_b32 {V(dst)}, {V(oob)}, {V(dst)}, vcc")
        a.I(f"s_mov_b32 {S(sT1)}, 4096")
        a.I(f"s_mul_i32 {S(sY)}, {S(sY)}, 6")
        a.I(f"s_cmp_eq_u32 {S(sW)}, 3")
        a.I(f"s_cselect_b32 {S(sK2)}, {S(sY)}, {S(sK2)}")
        tile4_dest(d4a, sK2, 0, 4)
        tile4_dest(d4b, sK2, 4, 2)
        self.poll(sCFP, sSEQ, "-1")
        self.stamp(46)
        c1 = W0 + 68
        tq = W0 + 67
        a.I(f"v_lshrrev_b32 {V(tq)}, 2, {V(vT16)}")
        lin(sT0, [(sM, 8192)], CS1)
        a.I(f"s_add_u32 {S(sT1)}, {S(sT0)}, 4096")
        rp = self.apoll_issue(sRFP)
        a.I("s_barrier")
        w1_pre = sum(n for (l, s_, g_, st_, n) in cfg['bg'] if st_ == 'W1' and l not in ('p1a', 'kvepi', 'p1b'))
        pre = self.draw('W1', w1_pre)
        for c in pre[:4 * cfg['pro_w1']]:
            c()
        for q in range(16):
            tc = a.I(f"buffer_load_dword {V(c1+q)}, {V(tq)}, {S(WS,4)}, {S(sT0 if q < 8 else sT1)} offen offset:{(q%8)*512} sc1")
        fr = W0 + 84
        LX, LJ = self.lab("qx"), self.lab("qj")

        def trd(k, addr, off, rowb):
            for u in range(2):
                t = a.I(f"ds_read_b64_tr_b16 {V(fr+4*k+2*u,2)}, {V(addr)} offset:{off+u*4*rowb}")
                a.lds_read(sb_slots, t)

        def n640_store(k, base):
            a.I(f"s_lshr_b32 {S(sT0)}, {S(sB)}, 2")
            a.I(f"s_mul_i32 {S(sT0)}, {S(sT0)}, 5120")
            a.I(f"s_and_b32 {S(sT1)}, {S(sB)}, 3")
            a.I(f"s_lshl_b32 {S(sT1)}, {S(sT1)}, 8")
            a.I(f"s_add_u32 {S(sT0)}, {S(sT0)}, {S(sT1)}")
            a.I(f"s_add_u32 {S(sT0)}, {S(sT0)}, {S(base)}")
            a.I(f"buffer_store_dwordx4 {V(fr+4*k,4)}, {V(d2)}, {S(WS,4)}, {S(sT0)} offen sc1")
        a.I(f"s_cmp_eq_u32 {S(sW)}, 3")
        a.I(f"s_cbranch_scc1 {LX}")
        st = a.save()
        a.I(f"s_mul_i32 {S(sT0)}, {S(sW)}, 1280")
        a.I(f"s_add_u32 {S(sT0)}, {S(sT0)}, {L_SB2}")
        a.I(f"v_add_u32 {V(r2)}, {S(sT0)}, {V(r2)}")
        a.I(f"v_add_u32 {V(r4)}, {L_SB2}, {V(r4)}")
        for rb in range(5):
            trd(rb, r3, rb * 3072, 192)
        trd(5, r2, 0, 160)
        trd(6, r4, 0, 160)
        a.I(f"s_lshr_b32 {S(sT2)}, {S(sG)}, 3")
        a.I(f"s_cmp_lt_u32 {S(sW)}, 2")
        a.I(f"s_cselect_b32 {S(sC)}, 8, 4")
        a.I(f"s_cselect_b32 {S(sT0)}, 0, 152")
        a.I(f"s_lshl_b32 {S(sC)}, {S(sC)}, 10")
        lin(sA, [(sT0, 1024), (sW, 4096), (sT2, 2048), (sM, 245760)], W3P)
        a.I(f"s_and_b32 {S(sB)}, {S(sG)}, 7")
        a.I(f"s_mul_i32 {S(sB)}, {S(sB)}, 5")
        a.I(f"v_mov_b32 {V(csum)}, 0")
        a.I(f"v_cmp_gt_u32 vcc, 3, {V(g4)}")
        a.I(f"v_cndmask_b32 {V(d4a)}, {V(oob)}, {V(d4a)}, vcc")
        a.drain_lg()
        for rb in range(5):
            a.I(f"s_lshr_b32 {S(sT0)}, {S(sB)}, 1")
            a.I(f"s_mul_i32 {S(sT0)}, {S(sT0)}, {S(sC)}")
            a.I(f"s_and_b32 {S(sT1)}, {S(sB)}, 1")
            a.I(f"s_lshl_b32 {S(sT1)}, {S(sT1)}, 9")
            a.I(f"s_add_u32 {S(sT0)}, {S(sT0)}, {S(sT1)}")
            a.I(f"s_add_u32 {S(sT0)}, {S(sT0)}, {S(sA)}")
            a.I(f"buffer_store_dwordx4 {V(fr+4*rb,4)}, {V(d3)}, {S(WS,4)}, {S(sT0)} offen sc1")
            for u in range(4):
                a.I(f"v_dot2c_f32_bf16 {V(csum)}, {V(fr+4*rb+u)}, {V(vONES)}")
            a.I(f"s_add_u32 {S(sB)}, {S(sB)}, 1")
        lin(sA, [(sSL, 102400)], W2P)
        a.I(f"s_add_u32 {S(sB)}, {S(sK2)}, {S(sW)}")
        n640_store(5, sA)
        a.I(f"buffer_store_dwordx4 {V(fr+24,4)}, {V(d4a)}, {S(WS,4)}, {S(sA)} offen sc1")
        a.I(f"v_mov_b32 {V(t0)}, {V(csum)}")
        a.I(f"v_permlane16_swap_b32 {V(csum)}, {V(t0)}")
        a.I(f"v_add_f32 {V(csum)}, {V(csum)}, {V(t0)}")
        a.I(f"v_lshlrev_b32 {V(t1)}, 2, {V(t16)}")
        a.I(f"v_lshl_add_u32 {V(t1)}, {V(hh)}, 6, {V(t1)}")
        a.I(f"s_and_b32 {S(sT1)}, {S(sG)}, 7")
        lin(sT0, [(sM, 6144), (sT1, 768), (sW, 256), (sT2, 128)], CS3)
        a.exec_mask(0xffff, 0xffff)
        a.I(f"buffer_store_dword {V(csum)}, {V(t1)}, {S(WS,4)}, {S(sT0)} offen sc1")
        a.I("s_mov_b64 exec, -1")
        a.flush_hazards()
        a.I(f"s_branch {LJ}")
        a.restore(st)
        a.label(LX)
        a.I(f"v_add_u32 {V(r2)}, {L_SB4}, {V(r2)}")
        a.I(f"v_add_u32 {V(r4)}, {L_SB4}, {V(r4)}")
        for kg in range(6):
            trd(kg, r2, kg * 1280, 160)
        trd(6, r4, 0, 160)
        trd(7, r4, 5120, 160)
        lin(sA, [(sSL, 245760)], W4P)
        a.I(f"s_mov_b32 {S(sB)}, {S(sK2)}")
        a.drain_lg()
        for kg in range(6):
            n640_store(kg, sA)
            a.I(f"s_add_u32 {S(sB)}, {S(sB)}, 1")
        a.I(f"buffer_store_dwordx4 {V(fr+24,4)}, {V(d4a)}, {S(WS,4)}, {S(sA)} offen sc1")
        a.I(f"buffer_store_dwordx4 {V(fr+28,4)}, {V(d4b)}, {S(WS,4)}, {S(sA)} offen sc1")
        a.flush_hazards()
        a.label(LJ)
        assert a.vm_issued - tc[1] == 8
        a.wait(tc)
        for q in range(0, 16, 4):
            a.I(f"v_pk_add_f32 {V(c1+q,2)}, {V(c1+q,2)}, {V(c1+q+2,2)}")
        a.I(f"v_pk_add_f32 {V(c1,2)}, {V(c1,2)}, {V(c1+4,2)}")
        a.I(f"v_pk_add_f32 {V(c1+8,2)}, {V(c1+8,2)}, {V(c1+12,2)}")
        a.I(f"v_pk_add_f32 {V(c1,2)}, {V(c1,2)}, {V(c1+8,2)}")
        a.I(f"v_add_f32 {V(c1)}, {V(c1)}, {V(c1+1)}")
        a.I(f"v_add_u32 {V(tq)}, {L_CS1}, {V(tq)}")
        a.I(f"v_cmp_gt_u32 vcc, 2048, {V(vT16)}")
        a.I("s_mov_b64 exec, vcc")
        a.I(f"ds_write_b32 {V(tq)}, {V(c1)}")
        a.I("s_mov_b64 exec, -1")
        for c in pre[4 * cfg['pro_w1']:]:
            c()
        self.apoll_check(rp, sRFP, sSEQ, S(sMC, 2))
        a.drain_lg()
        self.stamp(0)
        a.I(f"s_branch {name}_p1")

        a.flush_hazards()
        a.label(f"{name}_layer")
        self.body()
        n = len(a.lines)
        cnt = dict(a.count)
        a.restore(self.loop_state)
        self.body()
        del a.lines[n:]
        a.count = cnt
        a.label(f"{name}_end")
        a.I("s_endpgm")

    def body(self):
        self.reset_streams_body()
        self.poll(sRFP, sSEQ, S(sMT, 2))
        self.p1()
        self.p2()
        self.p3()
        self.p4()

    def reset_streams_body(self):
        self.where = (1, 0)
        for k in [k for k in self.steptok if k[0] == 'W3']:
            del self.steptok[k]
        w1 = self.pos['W1']
        self.pos = {'W1': w1, 'W2': 0, 'W3': 0, 'W4': 0}

    def p1(self):
        a, cfg = self.a, self.cfg
        acc, accq, wb = W0, W0 + 40, W0 + 64
        raw = wb + 32
        av, nm = raw + 8, raw + 16
        csk = nm + 8
        pk = accq
        assert csk + 6 <= 184
        st_tok = self.ring_start(sXA, 0, raw, cfg['p1_afirst'], entry_label=f"{self.name}_p1")
        self.ring_prime(0, 0, wb)
        fill = self.bg_loop('p1a')
        self.spread(fill, self.aload, 0, cfg['p1_agap'])
        sr = self.stats_reduce(raw, st_tok)
        m1, m2 = lmask(range(16), [1, 3]), lmask(range(16), [2, 3])
        sr += [lambda: a.I(f"s_mov_b32 {S(sMX)}, 0x{m1[0]:x}"), lambda: a.I(f"s_mov_b32 {S(sMX+1)}, 0x{m1[1]:x}"),
               lambda: a.I(f"v_cndmask_b32 {V(raw+3)}, {V(raw)}, {V(raw+4)}, {S(sMX,2)}"),
               lambda: a.I(f"v_cndmask_b32 {V(raw+7)}, {V(raw+1)}, {V(raw+5)}, {S(sMX,2)}"),
               lambda: a.I(f"s_mov_b32 {S(sMX)}, 0x{m2[0]:x}"), lambda: a.I(f"s_mov_b32 {S(sMX+1)}, 0x{m2[1]:x}"),
               lambda: a.I(f"v_cndmask_b32 {V(raw+3)}, {V(raw+3)}, {V(raw+7)}, {S(sMX,2)}"),
               lambda: a.I(f"ds_write_b32 {V(vSTWW)}, {V(raw+3)}")]
        for tt in range(2):
            sr.append(lambda tt=tt: a.I(f"ds_read_b128 {V(av+4*tt,4)}, {V(vSTWR)} offset:{64*tt}"))
            sr.append(lambda tt=tt: a.I(f"ds_read_b128 {V(nm+4*tt,4)}, {V(vSTWR)} offset:{128+64*tt}"))
        for T in range(5):
            sr.append(lambda T=T: a.I(f"ds_read_b32 {V(csk+T)}, {V(vCSL)} offset:{64*T}"))
        self.spread(fill, sr, cfg['p1_st'], 1)
        items = [(5 * ks + T, ks, acc + 8 * T, False) for ks in range(20) for T in range(5)]
        self.ring_loop('W1', 0, items, wb, fill, cfg['p1_bar'], 100)
        assert not fill, fill.keys()
        self.stamp(1)
        c3 = 172
        L = self.lab("b1")
        a.I(f"s_cmp_lg_u32 {S(sLAY)}, 0")
        a.I(f"s_cbranch_scc1 {L}")
        st = a.save()
        a.I(f"s_add_u32 {S(sT2)}, {S(sNON)}, 2")
        self.poll(sCFP, sT2, "-1")
        a.I(f"s_add_u32 {S(sT1)}, {S(sCFP)}, 256")
        self.poll(sT1, sT2, "-1")
        a.I(f"s_mul_i32 {S(sT0)}, {S(sM)}, 6144")
        a.I(f"s_add_u32 {S(sT0)}, {S(sT0)}, {CS3}")
        a.I(f"s_add_u32 {S(sT1)}, {S(sT0)}, 3072")
        a.I(f"v_lshrrev_b32 {V(c3+8)}, 2, {V(vT16)}")
        for q in range(8):
            a.I(f"buffer_load_dword {V(c3+q)}, {V(c3+8)}, {S(WS,4)}, {S(sT0 if q < 4 else sT1)} offen offset:{(q%4)*768} sc1", count=False)
        a.flush_hazards()
        a.restore(st)
        a.label(L)
        a.drain_lg()
        a.interleave(self.bg_list('kvepi'), cfg['kvepi_every'])
        tmp = wb

        def ln(T):
            sel = "op_sel:[0,1,0] op_sel_hi:[1,1,1]" if T & 1 else "op_sel:[0,0,0] op_sel_hi:[1,0,1]"
            cs = V(csk + (T & 6), 2)
            for r in range(0, 8, 2):
                x = V(acc + 8 * T + r, 2)
                a.I(f"v_pk_fma_f32 {x}, {V(nm+r,2)}, {cs}, {x} {sel}")
            for r in range(0, 8, 2):
                x = V(acc + 8 * T + r, 2)
                a.I(f"v_pk_mul_f32 {x}, {x}, {V(av+r,2)}")

        def phi(x0, dst, n, tmp):
            for r in range(n):
                a.I(f"v_min_f32 {V(tmp+r)}, 0, {V(x0+r)}")
            for r in range(0, n, 2):
                a.I(f"v_pk_mul_f32 {V(tmp+r,2)}, {V(tmp+r,2)}, {S(sLOG2E,2)}")
            for r in range(n):
                a.I(f"v_exp_f32 {V(tmp+r)}, {V(tmp+r)}")
                a.I(f"v_max_f32 {V(dst+r)}, 0, {V(x0+r)}")
            for r in range(0, n, 2):
                a.I(f"v_pk_add_f32 {V(dst+r,2)}, {V(dst+r,2)}, {V(tmp+r,2)}")
            for r in range(0, n, 2):
                a.I(f"v_pk_add_f32 {V(dst+r,2)}, {V(dst+r,2)}, {S(sEPS6,2)}")

        def pack(dst, src, n):
            for r in range(n):
                a.I(f"v_cvt_pk_bf16_f32 {V(dst+r)}, {V(src+2*r)}, {V(src+2*r+1)}")
        for T in range(5):
            ln(T)
        pack(pk + 12, acc + 24, 8)
        phi(acc, acc, 16, tmp)
        pack(pk, acc, 8)
        phi(acc + 16, tmp + 8, 8, tmp)
        mk = lmask(range(8), range(4))
        a.I(f"s_mov_b32 {S(sMX)}, 0x{mk[0]:x}")
        a.I(f"s_mov_b32 {S(sMX+1)}, 0x{mk[1]:x}")
        one = tmp + 16
        for r in range(4):
            a.I(f"v_mov_b32 {V(one+r)}, {V(vONES)}")
        D = {}
        nd = [0]

        def kvm(Ta, Tb):
            d = acc + 4 * nd[0] if nd[0] < 4 else acc + 24 + 4 * (nd[0] - 4) if nd[0] < 8 else tmp + 20 + 4 * (nd[0] - 8)
            nd[0] += 1
            D[(Ta, Tb)] = d
            b = V(one, 4) if Tb == 'z' else V(pk + 4 * Tb, 4)
            a.I(f"v_mfma_f32_16x16x32_bf16 {V(d,4)}, {V(pk+4*Ta,4)}, {b}, 0")
        kvm(0, 3)
        kvm(1, 3)
        kvm(1, 4)
        kvm(0, 'z')
        kvm(1, 'z')
        for r in range(8):
            a.I(f"v_cndmask_b32 {V(acc+16+r)}, {V(acc+16+r)}, {V(tmp+8+r)}, {S(sMX,2)}")
        pack(pk + 8, acc + 16, 4)
        kvm(0, 2)
        kvm(1, 2)
        kvm(2, 3)
        kvm(2, 4)
        kvm(2, 'z')
        a.interleave_end()
        allg = range(4)
        wr = [((0, 3), range(12), allg, 640), ((1, 3), range(12), [0], 640 + 64),
              ((1, 3), range(12, 16), [1, 2, 3], 1680 - 960 - 16), ((1, 4), range(16), [1, 2, 3], 1680 + 320 - 16),
              ((0, 'z'), [0], allg, 1600), ((1, 'z'), [0], [0], 1600 + 64), ((1, 'z'), [0], [1, 2, 3], 1680 + 1600 - 16),
              ((0, 2), range(8, 16), allg, -640), ((1, 2), range(8, 16), [0], -640 + 64),
              ((2, 3), range(12, 16), [0, 1], 1680 - 960 + 48), ((2, 4), range(16), [0, 1], 1680 + 320 + 48),
              ((2, 'z'), [0], [0, 1], 1680 + 1600 + 48)]
        kvs = list(range(KVW_SLOT, KVW_SLOT + 14))
        cur = (None, None)
        for i, (key, cs, gs, off) in enumerate(wr):
            lo, hi = lmask(cs, gs)
            if lo != cur[0]:
                a.I(f"s_mov_b32 exec_lo, 0x{lo:x}")
            if hi != cur[1]:
                a.I(f"s_mov_b32 exec_hi, 0x{hi:x}")
            cur = (lo, hi)
            t = a.I(f"ds_write_b128 {V(vKB)}, {V(D[key],4)} offset:{off+640}")
            a.lds_write(kvs, t, first=(i == 0))
        a.I("s_mov_b64 exec, -1")
        a.I(f"v_lshrrev_b32 {V(acc+16)}, 2, {V(vT16)}")
        a.I(f"v_add_u32 {V(vTMP)}, {L_KVW}, {V(acc+16)}")
        if cfg.get('kv_cover') is not None:
            a.wait(self.steptok[('W1', cfg['kv_cover'])])
        a.drain_lg()
        a.I("s_barrier")
        rt = []
        for q in range(4):
            for w in range(4):
                rt.append(a.I(f"ds_read_b32 {V(acc+4*q+w)}, {V(vTMP)} offset:{w*3360+q*1024}"))
                a.lds_read(kvs, rt[-1])
        for q in range(4):
            a.wait(rt[4 * q + 3])
            a.I(f"v_pk_add_f32 {V(acc+4*q,2)}, {V(acc+4*q,2)}, {V(acc+4*q+2,2)}")
            a.I(f"v_add_f32 {V(acc+4*q)}, {V(acc+4*q)}, {V(acc+4*q+1)}")
            if q == 3:
                a.I(f"v_cmp_gt_u32 vcc, {72*4}, {V(acc+16)}")
                a.I(f"v_or_b32 {V(acc+17)}, 0x{OOB:x}, {V(acc+16)}")
                a.I(f"v_cndmask_b32 {V(acc+16)}, {V(acc+17)}, {V(acc+16)}, vcc")
            kt = a.I(f"buffer_atomic_add_f32 {V(acc+4*q)}, {V(acc+16)}, {S(WS,4)}, {S(sKVS)} offen offset:{q*1024}")
        self.ring_prime(0, 100, wb)
        self.stamp(2)
        fill = self.bg_loop('p1b')

        def kvflag():
            a.I(f"v_mov_b32 {V(vTMP)}, {S(sKVF)}")
            a.I("s_mov_b64 exec, 0xffff")
            a.wait(kt)
            a.I(f"buffer_store_dword {V(vTMP)}, {V(vPL+1)}, {S(WS,4)}, {S(sCFW)} offen sc1")
            a.I("s_mov_b64 exec, -1")
        fill.setdefault(100 + cfg['kvflag_at'], []).insert(0, kvflag)
        csq = av
        for T in range(3):
            fill.setdefault(150 + T, []).append(lambda T=T: a.I(f"ds_read_b128 {V(csq+4*T,4)}, {V(vCSR)} offset:{64*(5+T)}"))
        items = [(100 + 3 * ks + T, ks, accq + 8 * T, True) for ks in range(20) for T in range(3)]
        self.ring_loop('W1', 0, items, wb, fill, cfg['p1_bar'], 160)
        assert not fill, fill.keys()
        self.pos['W1'] = 0
        self.stamp(3)
        a.drain_lg()
        kvp = []
        a.interleave(self.bg_list('qepi') + [lambda: kvp.append(self.apoll_issue(sCFP))], cfg['qepi_every'])
        for T in range(3):
            for tt in range(2):
                for r in (0, 2):
                    x = V(accq + 8 * T + 4 * tt + r, 2)
                    a.I(f"v_pk_fma_f32 {x}, {V(csq+4*T+r,2)}, {V(raw+4*tt,2)}, {x} op_sel:[0,1,0] op_sel_hi:[1,1,1]")
        for T in range(3):
            for tt in range(2):
                for r in (0, 2):
                    x = V(accq + 8 * T + 4 * tt + r, 2)
                    a.I(f"v_pk_mul_f32 {x}, {x}, {V(raw+4*tt,2)} op_sel_hi:[1,0]")
        phi(accq, accq, 24, wb)
        pq = acc
        for tt in range(2):
            for h in range(2):
                pack(pq + 8 * tt + 4 * h, accq + 8 * h + 4 * tt, 2)
                pack(pq + 8 * tt + 4 * h + 2, accq + 16 + 4 * tt, 2)
        a.interleave_end()
        kvp_tok = kvp[0]
        L = self.lab("xc")
        a.I(f"s_cmp_lg_u32 {S(sLAY)}, 0")
        a.I(f"s_cbranch_scc1 {L}")
        st = a.save()
        a.I(f"s_lshr_b32 {S(sT1)}, {S(sRFP)}, 1")
        a.I(f"s_add_u32 {S(sT1)}, {S(sT1)}, {F_XCC - F_ROW // 2}")
        a.I(f"s_add_u32 {S(sT2)}, {S(sNON)}, 1")
        self.poll(sT1, sT2, "0xffff")
        for q in range(1, 8):
            a.I(f"v_add_f32 {V(c3)}, {V(c3)}, {V(c3+q)}")
        a.I(f"v_add_u32 {V(c3+8)}, {L_CS3}, {V(c3+8)}")
        a.I(f"v_cmp_gt_u32 vcc, 3072, {V(vT16)}")
        a.I("s_mov_b64 exec, vcc")
        a.I(f"ds_write_b32 {V(c3+8)}, {V(c3)}")
        a.I("s_mov_b64 exec, -1")
        a.drain_lg()
        a.I(f"v_readfirstlane_b32 {S(sT2)}, {V(vTMP)}")
        a.I("s_mov_b64 exec, 0xffff")
        a.I(f"v_cmp_ne_u32 vcc, {S(sT2)}, {V(vTMP)}")
        a.I("s_mov_b64 exec, -1")
        a.I("s_cmp_eq_u64 vcc, 0")
        a.I(f"s_cselect_b32 {S(sFAST)}, {1 if cfg.get('fast', 1) else 0}, 0")
        a.flush_hazards()
        a.label(L)
        a.restore(dict(a.save(), vm_done=st['vm_done'], lg_issued=st['lg_issued'], lg_done=st['lg_done']))
        self.bg_now('kvwait')
        self.apoll_check(kvp_tok, sCFP, sKVF, '-1')
        self.stamp(4)
        kb = acc + 16
        self.run = {}
        tk = a.I(f"buffer_load_dwordx4 {V(kb,4)}, {V(vT16)}, {S(WS,4)}, {S(sKVS)} offen sc1")
        self.bg_now('kvload')
        a.wait(tk)
        a.I(f"v_cvt_pk_bf16_f32 {V(kb)}, {V(kb)}, {V(kb+1)}")
        a.I(f"v_cvt_pk_bf16_f32 {V(kb+1)}, {V(kb+2)}, {V(kb+3)}")
        a.I(f"ds_write_b64 {V(vKAW)}, {V(kb,2)}")
        a.drain_lg()
        a.I("s_barrier")
        self.stamp(5)
        ka = kb + 4
        kt_ = [a.I(f"ds_read_b128 {V(ka+4*k,4)}, {V(vKA+k)}") for k in (5, 6, 0, 1, 2, 3, 4)]
        Do = ka + 28
        plan = [(3, 5, 0, True), (3, 6, 1, False), (0, 0, 0, True), (0, 1, 1, False), (1, 2, 0, True), (1, 3, 1, False), (2, 4, 1, True)]
        for i, (o, k, h, first) in enumerate(plan):
            a.wait(kt_[i])
            for tt in range(2):
                d = V(Do + 16 * tt + 4 * o, 4)
                a.I(f"v_mfma_f32_16x16x32_bf16 {d}, {V(ka+4*k,4)}, {V(pq+8*tt+4*h,4)}, {'0' if first else d}")
        og = ka
        for tt in range(2):
            z = Do + 16 * tt + 12
            a.I(f"v_pk_add_f32 {V(z,2)}, {V(z,2)}, {S(sEPS6,2)}")
        for tt in range(2):
            z = Do + 16 * tt + 12
            a.I(f"v_rcp_f32 {V(z)}, {V(z)}")
            a.I(f"v_rcp_f32 {V(z+1)}, {V(z+1)}")
        a.I(f"s_mov_b32 {S(sMX)}, 0")
        a.I(f"s_mov_b32 {S(sMX+1)}, 0xffff0000")
        for tt in range(2):
            z = Do + 16 * tt + 12
            a.I(f"v_cndmask_b32 {V(z+2)}, {V(z)}, {V(z+1)}, {S(sMX,2)}")
        a.I(f"s_mov_b32 {S(sMX+1)}, -1")
        for tt in range(2):
            z = Do + 16 * tt + 12
            a.I(f"v_cndmask_b32 {V(z+3)}, {V(z)}, {V(z+1)}, {S(sMX,2)}")
        for tt in range(2):
            d = Do + 16 * tt
            z = d + 12
            for r in (0, 2):
                a.I(f"v_pk_mul_f32 {V(d+r,2)}, {V(d+r,2)}, {V(z+2,2)} op_sel_hi:[1,0]")
                a.I(f"v_pk_mul_f32 {V(d+4+r,2)}, {V(d+4+r,2)}, {V(z+2,2)} op_sel:[0,1] op_sel_hi:[1,1]")
                a.I(f"v_pk_mul_f32 {V(d+8+r,2)}, {V(d+8+r,2)}, {V(z,2)} op_sel:[0,1] op_sel_hi:[1,1]")
            pack(og + 8 * tt, d, 6)
        a.I(f"s_add_u32 {S(sT0)}, {S(sOW)}, 20480")

        def stores(mod):
            a.I(f"buffer_store_dwordx4 {V(og,4)}, {V(vL16)}, {S(WS,4)}, {S(sOW)} offen {mod}")
            a.I(f"buffer_store_dwordx4 {V(og+8,4)}, {V(vL16)}, {S(WS,4)}, {S(sT0)} offen {mod}")
            a.I("s_mov_b32 exec_hi, 0")
            a.I(f"buffer_store_dwordx2 {V(og+4,2)}, {V(vXD2)}, {S(WS,4)}, {S(sOW)} offen offset:1024 {mod}")
            a.I(f"buffer_store_dwordx2 {V(og+12,2)}, {V(vXD2)}, {S(WS,4)}, {S(sT0)} offen offset:1024 {mod}")
        a.dual(S(sFAST), stores, self.lab("os"))
        tok = a.last_vm()
        a.I("s_mov_b64 exec, -1")
        self.bg_now('opub0')
        self.publish_row(tok)
        self.bg_now('opub')
        self.stamp(6)

    def p2(self):
        a, cfg = self.a, self.cfg
        self.poll(sRFP, sSEQ, S(sMK, 2))
        self.stamp(7)
        assert self.pos['W2'] == 25
        for c in self.ksplit_begin([list(range(5))], [('a', 4 * i) for i in range(20)], sOA, cfg['p2_afirst']):
            c()
        self.ksplit_gemm(self.w2regs, sEX2, [0, 16, 32, 128], W0 + 80, self.bg_loop('p2'))
        self.stamp(8)
        self.where = (3, 0)
        self.resid_epilogue(W0 + 80, False, 'p2pub')
        self.stamp(9)

    def p3(self):
        a, cfg = self.a, self.cfg
        self.poll(sRFP, sSEQ, S(sMT, 2))
        self.stamp(10)
        wb = W0
        raw = wb + 32
        cs = raw + 8
        t = cs + 16
        hg = t + 8
        acc = hg + 8
        assert acc + 32 <= 152 and acc + 64 <= 184
        a.I(f"s_cmp_eq_u32 {S(sLAY)}, 0")
        a.I(f"s_cselect_b32 {S(WSZ+2)}, {WS_BYTES}, 0")
        a.I(f"s_add_u32 {S(sT2)}, {S(sXA)}, {XP_SZ}")
        st_tok = self.ring_start(sT2, 0x20000, raw, cfg['p3_afirst'])
        self.ring_prime(W3_ORG, 0, wb)
        a.I(f"s_add_u32 {S(sT3)}, {S(sHW)}, 49152")
        fill = self.bg_loop('p3')
        self.spread(fill, self.aload, 0, cfg['p3_agap'])
        self.spread(fill, self.stats_reduce(raw, st_tok), cfg['p3_st'], 1)
        cstok, ptok = [], []

        def rdcs(p, T):
            cstok.append(a.I(f"ds_read_b128 {V(cs+4*T,4)}, {V(vCSR)} offset:{512+64*(4*p+T)}"))

        def epi(p, ac, nxt=None):
            a.wait(cstok[-1])
            for tt in range(2):
                rs = V(raw + 4 * tt, 2)
                sd = V(raw + 4 * tt + 2, 2)
                G = lambda r: ac + 8 * (r >> 2) + 4 * tt + (r & 3)
                U = lambda r: ac + 16 + 8 * (r >> 2) + 4 * tt + (r & 3)
                for r in range(0, 8, 2):
                    a.I(f"v_pk_fma_f32 {V(G(r),2)}, {V(cs+r,2)}, {rs}, {V(G(r),2)} op_sel:[0,1,0] op_sel_hi:[1,1,1]")
                for r in range(0, 8, 2):
                    a.I(f"v_pk_mul_f32 {V(G(r),2)}, {V(G(r),2)}, {rs} op_sel_hi:[1,0]")
                for r in range(0, 8, 2):
                    a.I(f"v_pk_mul_f32 {V(t+r,2)}, {V(G(r),2)}, {V(G(r),2)}")
                for r in range(0, 8, 2):
                    a.I(f"v_pk_fma_f32 {V(t+r,2)}, {V(t+r,2)}, {S(sC1,2)}, {V(vC0,2)} op_sel_hi:[1,1,0]")
                for r in range(0, 8, 2):
                    a.I(f"v_pk_mul_f32 {V(t+r,2)}, {V(t+r,2)}, {V(G(r),2)}")
                for r in range(8):
                    a.I(f"v_exp_f32 {V(t+r)}, {V(t+r)}")
                    if r & 1:
                        a.I(f"v_pk_fma_f32 {V(U(r-1),2)}, {V(cs+8+r-1,2)}, {rs}, {V(U(r-1),2)} op_sel:[0,1,0] op_sel_hi:[1,1,1]")
                if tt == 1 and nxt is not None:
                    for T in range(4):
                        rdcs(nxt, T)
                for r in range(0, 8, 2):
                    a.I(f"v_pk_fma_f32 {V(t+r,2)}, {V(t+r,2)}, {sd}, {sd} op_sel_hi:[1,0,0]")
                for r in range(8):
                    a.I(f"v_rcp_f32 {V(t+r)}, {V(t+r)}")
                    if r & 1:
                        a.I(f"v_pk_mul_f32 {V(U(r-1),2)}, {V(U(r-1),2)}, {V(G(r-1),2)}")
                for r in range(0, 8, 2):
                    a.I(f"v_pk_mul_f32 {V(U(r),2)}, {V(U(r),2)}, {V(t+r,2)}")
                for r in range(4):
                    a.I(f"v_cvt_pk_bf16_f32 {V(hg+4*tt+r)}, {V(U(2*r))}, {V(U(2*r)+1)}")

            def stores(mod):
                a.I(f"buffer_store_dwordx4 {V(hg,4)}, {V(vL16)}, {S(WS,4)}, {S(sHW)} offen offset:{p*1024} {mod}")
                a.I(f"buffer_store_dwordx4 {V(hg+4,4)}, {V(vL16)}, {S(WS,4)}, {S(sT3)} offen offset:{p*1024} {mod}")
            if cfg.get('h_sc1', 3) > p:
                stores('sc1')
            else:
                a.dual(S(sFAST), stores, self.lab("hs"))
            return a.last_vm()
        for T in range(4):
            fill.setdefault(140 + T, []).append(lambda T=T: rdcs(0, T))
        items = [(8 * ks + T, ks, acc + 8 * T, True) for ks in range(20) for T in range(8)]
        self.ring_loop('W3', W3_ORG, items, wb, fill, cfg['p3_bar'], 240)
        self.stamp(15)
        a.interleave(self.bg_list('p3epiA'), cfg['p3epiA_every'])
        epi(0, acc, 1)
        htok = epi(1, acc + 32, 2)
        a.interleave_end()
        fill.setdefault(160 + cfg['hflag_at'], []).insert(0, lambda: self.publish_row(htok))
        fill.setdefault(240 - cfg['hpoll_lead'], []).append(lambda: ptok.append(self.apoll_issue(sRFP)))
        items = [(160 + 4 * ks + T, ks, acc + 8 * T, True) for ks in range(20) for T in range(4)]
        self.ring_loop('W3', W3_ORG, items, wb, fill, cfg['p3_bar'], 240)
        assert not fill, fill.keys()
        self.stamp(11)
        self.apoll_check(ptok[0], sRFP, sSEQ, S(sMK, 2))
        al = self.ksplit_begin([P4_EARLY, P4_LATE], [('a', 40 + 4 * i) for i in range(30)], sHA, cfg['p4_afirst'])
        a.interleave(al + self.bg_list('p3epiB'), cfg['p3epiB_every'])
        self.h2tok = epi(2, acc)
        a.interleave_end()
        self.stamp(12)

    def p4(self):
        a, cfg, name = self.a, self.cfg, self.name
        assert self.pos['W4'] == 60 and self.pos['W3'] == 15
        order = [5 * k + T for k in P4_EARLY + P4_LATE for T in range(5)]
        wmap = {order[i]: self.w4seq[i] for i in range(60)}
        recv = 184
        bg = self.bg_loop('p4')
        bg.setdefault(cfg['h2flag_at'], []).insert(0, lambda: self.publish_row(self.h2tok))
        bg.setdefault(cfg['p4_bar_at'], []).insert(0, lambda: a.I("s_barrier"))
        self.ksplit_gemm(wmap, sEX4, [80, 96, 112, 128], recv, bg, mid=True)
        self.stamp(13)
        Lout, st = self.resid_epilogue(recv, True, 'p4pub')
        self.stamp(14)
        a.I(f"s_mov_b32 {S(sLAY)}, 1")
        a.I(f"s_add_u32 {S(sXA)}, {S(sXA)}, {2*XP_SZ}")
        a.I(f"s_add_u32 {S(sSTR)}, {S(sSTR)}, 0x40000")
        a.I(f"s_add_u32 {S(sOW)}, {S(sOW)}, {XP_SZ}")
        a.I(f"s_add_u32 {S(sHW)}, {S(sHW)}, {HP_SZ}")
        for r in range(4):
            a.I(f"s_add_u32 {S(sOA+r)}, {S(sOA+r)}, {XP_SZ}")
            a.I(f"s_add_u32 {S(sHA+r)}, {S(sHA+r)}, {HP_SZ}")
        a.I(f"s_add_u32 {S(sKVS)}, {S(sKVS)}, 0x10000")
        a.I(f"s_add_u32 {S(sKVF)}, {S(sKVF)}, 1")
        a.I(f"s_add_u32 {S(sSTAMP)}, {S(sSTAMP)}, 192")
        a.flush_hazards()
        a.I(f"s_branch {name}_layer")
        self.loop_state = a.save()
        a.restore(st)
        a.label(Lout)
        t = W0
        a.I(f"v_and_b32 {V(t)}, 15, {V(vLANE)}")
        a.I(f"v_lshrrev_b32 {V(t+1)}, 4, {V(vLANE)}")
        a.I(f"v_mul_u32_u24 {V(t)}, 1280, {V(t)}")
        a.I(f"v_lshl_add_u32 {V(t+2)}, {V(t+1)}, 4, {V(t)}")
        a.I(f"v_lshl_add_u32 {V(t+3)}, {V(t+1)}, 3, {V(t)}")
        a.I(f"s_mul_i32 {S(sT0)}, {S(sG)}, {128*1280}")
        a.I(f"s_mul_i32 {S(sT1)}, {S(sHF)}, {64*1280}")
        a.I(f"s_add_u32 {S(sT0)}, {S(sT0)}, {S(sT1)}")
        a.I(f"s_mul_i32 {S(sT1)}, {S(sW)}, {16*1280}")
        a.I(f"s_add_u32 {S(sT0)}, {S(sT0)}, {S(sT1)}")
        a.I(f"s_mul_i32 {S(sT1)}, {S(sSL)}, 160")
        a.I(f"s_add_u32 {S(sT0)}, {S(sT0)}, {S(sT1)}")
        a.I(f"buffer_store_dwordx4 {V(vRES,4)}, {V(t+2)}, {S(OUT,4)}, {S(sT0)} offen")
        a.I(f"buffer_store_dwordx4 {V(vRES+4,4)}, {V(t+2)}, {S(OUT,4)}, {S(sT0)} offen offset:64")
        a.I(f"buffer_store_dwordx2 {V(vRES+8,2)}, {V(t+3)}, {S(OUT,4)}, {S(sT0)} offen offset:128")
        self.stamp(14)
        if cfg.get('stamps'):
            a.drain_vm(force=True)
            a.I("s_memrealtime s[82:83]")
            a.I("s_memtime s[84:85]")
            a.drain_lg(force=True)
            a.I("s_mov_b64 exec, 1")
            for i, r in enumerate((100, 80, 82, 84)):
                a.I(f"v_mov_b32 {V(vTMP)}, {S(r)}")
                a.I(f"buffer_store_dword {V(vTMP)}, {V(vTMP+1)}, {S(WS,4)}, {S(sSTAMP)} offen offset:{192+i*4}")
```

```python
from asmlib import *
from layout import *

OOB = 0x40000000


def ids(a, sg, sm, st):
    a.I(f"s_and_b32 {S(sg)}, s2, 7")
    a.I(f"s_lshl_b32 {S(sg)}, {S(sg)}, 1")
    a.I(f"s_lshr_b32 {S(st)}, s2, 7")
    a.I(f"s_add_u32 {S(sg)}, {S(sg)}, {S(st)}")
    a.I(f"s_lshr_b32 {S(sm)}, s2, 3")
    a.I(f"s_and_b32 {S(sm)}, {S(sm)}, 15")


def srd(a, d, ptr, nbytes):
    a.I(f"s_mov_b32 {S(d)}, {S(ptr)}")
    a.I(f"s_mov_b32 {S(d+1)}, {S(ptr+1)}")
    a.I(f"s_mov_b32 {S(d+2)}, {nbytes}")
    a.I(f"s_mov_b32 {S(d+3)}, 0x20000")


def gen_pack(a, name, st_mod=""):
    a.raw(f".globl {name}\n.p2align 8\n.type {name},@function\n{name}:")
    a.I("s_cmp_ge_u32 s2, 256")
    a.I(f"s_cbranch_scc1 {name}_end")
    a.I("s_load_dwordx16 s[4:19], s[0:1], 0")
    a.I("s_load_dwordx2 s[20:21], s[0:1], 72")
    SG, SM, SW, SY, ST0, ST1, SSO, SDO = 22, 23, 24, 25, 26, 27, 28, 29
    ids(a, SG, SM, ST0)
    a.I("v_lshrrev_b32 v1, 6, v0")
    a.I(f"v_readfirstlane_b32 {S(SW)}, v1")
    a.I("v_and_b32 v0, 63, v0")
    a.I("v_and_b32 v1, 15, v0")
    a.I("v_lshrrev_b32 v2, 4, v0")
    a.I("v_lshlrev_b32 v3, 4, v0")
    a.I("v_mov_b32 v4, 0x3f803f80")
    a.I("s_waitcnt lgkmcnt(0)")
    WS, SRC = 32, 36
    srd(a, WS, 20, WS_BYTES)
    a.I(f"s_lshr_b32 {S(SY)}, {S(SM)}, 3")
    a.I(f"s_lshl_b32 {S(SY)}, {S(SY)}, 4")
    a.I(f"s_add_u32 {S(SY)}, {S(SY)}, {S(SG)}")
    SG2, SGO, SSL = 30, 31, 40
    a.I(f"s_lshr_b32 {S(SG2)}, {S(SG)}, 1")
    a.I(f"s_and_b32 {S(SGO)}, {S(SG)}, 1")
    a.I(f"s_and_b32 {S(SSL)}, {S(SM)}, 7")

    def frag_loads(vcol, rowb, base_reg):
        for i in range(8):
            if i:
                a.I(f"s_add_u32 {S(ST1)}, {S(SSO)}, {i*rowb}")
            a.I(f"buffer_load_ushort {V(base_reg+i)}, {V(vcol)}, {S(SRC,4)}, {S(ST1 if i else SSO)} offen")

    def frag_pack(base_reg, dst, cs=None):
        for q in range(4):
            a.I(f"v_lshl_or_b32 {V(dst+q)}, {V(base_reg+2*q+1)}, 16, {V(base_reg+2*q)}")
        if cs is not None:
            for q in range(4):
                a.I(f"v_dot2c_f32_bf16 {V(cs)}, {V(dst+q)}, v4")

    def col_job(vcol, rowb, dst_stride, cs_base):
        a.I("v_mov_b32 v9, 0")
        for u in range(5):
            frag_loads(vcol, rowb, 16 + 8 * u)
            if u < 4:
                a.I(f"s_add_u32 {S(SSO)}, {S(SSO)}, {32*rowb}")
        a.drain_vm()
        for u in range(5):
            frag_pack(16 + 8 * u, 56 + 4 * u, cs=9)
            a.I(f"buffer_store_dwordx4 {V(56+4*u,4)}, v3, {S(WS,4)}, {S(SDO)} offen {st_mod}")
            if u < 4:
                a.I(f"s_add_u32 {S(SDO)}, {S(SDO)}, {S(dst_stride)}")
        for ins in ("v_permlane16_swap_b32", "v_permlane32_swap_b32"):
            a.I("v_mov_b32 v10, v9")
            a.I(f"{ins} v9, v10")
            a.I("v_add_f32 v9, v9, v10")
        a.I("v_lshlrev_b32 v10, 2, v1")
        a.I("s_mov_b64 exec, 0xffff")
        a.I(f"buffer_store_dword v9, v10, {S(WS,4)}, {S(cs_base)} offen {st_mod}")
        a.I("s_mov_b64 exec, -1")

    ST_T, ST_Q, ST_DS, ST_CS = 41, 44, 45, 46

    def w1_job():
        a.I(f"s_lshl_b32 {S(ST0)}, {S(SG)}, 1")
        a.I(f"s_add_u32 {S(ST0)}, {S(ST0)}, {S(SW)}")
        a.I(f"s_lshr_b32 {S(ST_T)}, {S(ST0)}, 2")
        a.I(f"s_and_b32 {S(ST_Q)}, {S(ST0)}, 3")
        srd(a, SRC, 6, 640 * 1920 * 2)
        a.I(f"s_lshl_b32 {S(ST0)}, {S(ST_T)}, 4")
        a.I(f"v_add_u32 v5, {S(ST0)}, v1")
        a.I("v_add_u32 v6, 640, v5")
        a.I("v_add_u32 v7, 1240, v5")
        a.I("v_cmp_gt_u32 vcc, 40, v5")
        a.I("v_cndmask_b32 v8, v7, v6, vcc")
        a.I("v_add_u32 v5, 16, v1")
        a.I("v_add_u32 v6, 32, v1")
        a.I("v_cmp_gt_u32 vcc, 4, v1")
        a.I("v_cndmask_b32 v5, v6, v5, vcc")
        a.I(f"v_mov_b32 v7, {OOB >> 1}")
        a.I("v_cmp_gt_u32 vcc, 8, v1")
        a.I("v_cndmask_b32 v5, v7, v5, vcc")
        a.I("v_add_u32 v6, 20, v1")
        for tt, vr in ((5, 1), (6, 6), (7, 5)):
            a.I(f"s_cmp_eq_u32 {S(ST_T)}, {tt}")
            a.I("s_cselect_b64 s[42:43], -1, 0")
            a.I(f"v_cndmask_b32 v8, v8, {V(vr)}, s[42:43]")
        a.I("v_lshlrev_b32 v8, 1, v8")
        a.I("v_mul_u32_u24 v6, 30720, v2")
        a.I("v_add_u32 v8, v8, v6")
        a.I(f"s_mul_i32 {S(SSO)}, {S(ST_Q)}, {160*3840}")
        a.I(f"s_mul_i32 {S(ST0)}, {S(SM)}, 80")
        a.I(f"s_add_u32 {S(SSO)}, {S(SSO)}, {S(ST0)}")
        a.I(f"s_cmp_lt_u32 {S(ST_T)}, 5")
        a.I(f"s_cselect_b32 {S(ST_DS)}, 5, 3")
        a.I(f"s_cselect_b32 {S(ST0)}, 0, {95*1024}")
        a.I(f"s_lshl_b32 {S(ST_DS)}, {S(ST_DS)}, 10")
        a.I(f"s_mul_i32 {S(SDO)}, {S(ST_DS)}, {S(ST_Q)}")
        a.I(f"s_mul_i32 {S(SDO)}, {S(SDO)}, 5")
        a.I(f"s_add_u32 {S(SDO)}, {S(SDO)}, {S(ST0)}")
        a.I(f"s_lshl_b32 {S(ST0)}, {S(ST_T)}, 10")
        a.I(f"s_add_u32 {S(SDO)}, {S(SDO)}, {S(ST0)}")
        a.I(f"s_mul_i32 {S(ST0)}, {S(SM)}, 163840")
        a.I(f"s_add_u32 {S(SDO)}, {S(SDO)}, {S(ST0)}")
        a.I(f"s_add_u32 {S(SDO)}, {S(SDO)}, {W1P}")
        a.I(f"s_lshl_b32 {S(ST_CS)}, {S(SM)}, 11")
        a.I(f"s_lshl_b32 {S(ST0)}, {S(ST_Q)}, 9")
        a.I(f"s_add_u32 {S(ST_CS)}, {S(ST_CS)}, {S(ST0)}")
        a.I(f"s_lshl_b32 {S(ST0)}, {S(ST_T)}, 6")
        a.I(f"s_add_u32 {S(ST_CS)}, {S(ST_CS)}, {S(ST0)}")
        a.I(f"s_add_u32 {S(ST_CS)}, {S(ST_CS)}, {CS1}")
        col_job(8, 3840, ST_DS, ST_CS)

    def w3_job():
        a.I(f"s_mul_i32 {S(ST0)}, {S(SG)}, 3")
        a.I(f"s_add_u32 {S(ST0)}, {S(ST0)}, {S(SW)}")
        a.I(f"s_lshr_b32 {S(ST_T)}, {S(ST0)}, 2")
        a.I(f"s_and_b32 {S(ST_Q)}, {S(ST0)}, 3")
        a.I(f"s_bitcmp0_b32 {S(ST_T)}, 1")
        a.I("s_cselect_b32 s42, s12, s14")
        a.I("s_cselect_b32 s43, s13, s15")
        srd(a, SRC, 42, 640 * 1536 * 2)
        a.I("v_and_b32 v5, 12, v1")
        a.I("v_add_u32 v5, v5, v1")
        a.I("v_lshlrev_b32 v8, 1, v5")
        a.I("v_mul_u32_u24 v6, 24576, v2")
        a.I("v_add_u32 v8, v8, v6")
        a.I(f"s_mul_i32 {S(SSO)}, {S(ST_Q)}, {160*3072}")
        a.I(f"s_mul_i32 {S(ST0)}, {S(SM)}, 192")
        a.I(f"s_add_u32 {S(SSO)}, {S(SSO)}, {S(ST0)}")
        a.I(f"s_lshr_b32 {S(ST1)}, {S(ST_T)}, 2")
        a.I(f"s_lshl_b32 {S(ST0)}, {S(ST1)}, 6")
        a.I(f"s_add_u32 {S(SSO)}, {S(SSO)}, {S(ST0)}")
        a.I(f"s_and_b32 {S(ST0)}, {S(ST_T)}, 1")
        a.I(f"s_lshl_b32 {S(ST0)}, {S(ST0)}, 3")
        a.I(f"s_add_u32 {S(SSO)}, {S(SSO)}, {S(ST0)}")
        a.I(f"s_cmp_lt_u32 {S(ST_T)}, 8")
        a.I(f"s_cselect_b32 {S(ST_DS)}, 8, 4")
        a.I(f"s_cselect_b32 {S(ST0)}, 0, {152*1024}")
        a.I(f"s_lshl_b32 {S(ST_DS)}, {S(ST_DS)}, 10")
        a.I(f"s_mul_i32 {S(SDO)}, {S(ST_DS)}, {S(ST_Q)}")
        a.I(f"s_mul_i32 {S(SDO)}, {S(SDO)}, 5")
        a.I(f"s_add_u32 {S(SDO)}, {S(SDO)}, {S(ST0)}")
        a.I(f"s_lshl_b32 {S(ST0)}, {S(ST_T)}, 10")
        a.I(f"s_add_u32 {S(SDO)}, {S(SDO)}, {S(ST0)}")
        a.I(f"s_mul_i32 {S(ST0)}, {S(SM)}, 245760")
        a.I(f"s_add_u32 {S(SDO)}, {S(SDO)}, {S(ST0)}")
        a.I(f"s_add_u32 {S(SDO)}, {S(SDO)}, {W3P}")
        a.I(f"s_mul_i32 {S(ST_CS)}, {S(SM)}, 3072")
        a.I(f"s_mul_i32 {S(ST0)}, {S(ST_Q)}, 768")
        a.I(f"s_add_u32 {S(ST_CS)}, {S(ST_CS)}, {S(ST0)}")
        a.I(f"s_lshl_b32 {S(ST0)}, {S(ST_T)}, 6")
        a.I(f"s_add_u32 {S(ST_CS)}, {S(ST_CS)}, {S(ST0)}")
        a.I(f"s_add_u32 {S(ST_CS)}, {S(ST_CS)}, {CS3}")
        col_job(8, 3072, ST_DS, ST_CS)

    def n640_job(ptr, src_rows, nfr, limit, dst_base, dst_slice, lbl):
        a.I(f"s_cmp_ge_u32 {S(SY)}, {limit}")
        a.I(f"s_cbranch_scc1 {lbl}")
        srd(a, SRC, ptr, src_rows * 1280)
        a.I("v_and_b32 v5, 15, v0")
        a.I("v_lshrrev_b32 v6, 4, v0")
        a.I("v_mul_u32_u24 v6, 10240, v6")
        a.I("v_lshl_add_u32 v7, v5, 1, v6")
        a.I("v_and_b32 v8, 12, v5")
        a.I("v_add_u32 v8, v8, v5")
        a.I("v_lshl_add_u32 v8, v8, 1, v6")
        SF, SKS, STT = 41, 44, 45
        a.I(f"s_mul_i32 {S(SF)}, {S(SY)}, {nfr}")
        a.I(f"s_mul_i32 {S(SDO)}, {S(SSL)}, {dst_slice}")
        a.I(f"s_lshl_b32 {S(ST0)}, {S(SF)}, 10")
        a.I(f"s_add_u32 {S(SDO)}, {S(SDO)}, {S(ST0)}")
        a.I(f"s_add_u32 {S(SDO)}, {S(SDO)}, {dst_base}")
        for b0 in range(0, nfr, 4):
            for q in range(4):
                a.I(f"s_mul_i32 {S(SKS)}, {S(SF)}, 205")
                a.I(f"s_lshr_b32 {S(SKS)}, {S(SKS)}, 10")
                a.I(f"s_mul_i32 {S(ST0)}, {S(SKS)}, 5")
                a.I(f"s_sub_u32 {S(STT)}, {S(SF)}, {S(ST0)}")
                a.I(f"s_mul_i32 {S(SSO)}, {S(SKS)}, {32*1280}")
                a.I(f"s_mul_i32 {S(ST0)}, {S(SSL)}, 160")
                a.I(f"s_add_u32 {S(SSO)}, {S(SSO)}, {S(ST0)}")
                a.I(f"s_lshr_b32 {S(ST0)}, {S(STT)}, 1")
                a.I(f"s_lshl_b32 {S(ST0)}, {S(ST0)}, 6")
                a.I(f"s_add_u32 {S(SSO)}, {S(SSO)}, {S(ST0)}")
                a.I(f"s_and_b32 {S(ST0)}, {S(STT)}, 1")
                a.I(f"s_lshl_b32 {S(ST0)}, {S(ST0)}, 3")
                a.I(f"s_add_u32 {S(SSO)}, {S(SSO)}, {S(ST0)}")
                a.I(f"s_cmp_eq_u32 {S(STT)}, 4")
                a.I("s_cselect_b64 s[42:43], -1, 0")
                a.I(f"v_cndmask_b32 {V(11+q)}, v8, v7, s[42:43]")
                frag_loads(11 + q, 1280, 16 + 8 * q)
                a.I(f"s_add_u32 {S(SF)}, {S(SF)}, 1")
            a.drain_vm()
            for q in range(4):
                frag_pack(16 + 8 * q, 56 + 4 * q)
                a.I(f"buffer_store_dwordx4 {V(56+4*q,4)}, v3, {S(WS,4)}, {S(SDO)} offen offset:{q*1024} {st_mod}")
            a.I(f"s_add_u32 {S(SDO)}, {S(SDO)}, 4096")
        a.flush_hazards()
        a.label(lbl)

    def x_job():
        srd(a, SRC, 4, 2048 * 1280)
        a.I("v_and_b32 v5, 7, v0")
        a.I("v_lshrrev_b32 v6, 3, v0")
        a.I("v_mul_u32_u24 v7, 1280, v5")
        a.I("v_lshl_add_u32 v7, v6, 4, v7")
        a.I("v_lshlrev_b32 v8, 4, v5")
        a.I("v_lshl_add_u32 v8, v6, 8, v8")
        a.I(f"s_lshl_b32 {S(ST0)}, {S(SG)}, 4")
        a.I(f"s_add_u32 {S(ST0)}, {S(ST0)}, {S(SM)}")
        a.I(f"s_mul_i32 {S(SSO)}, {S(ST0)}, {8*1280}")
        for i in range(10):
            a.I(f"buffer_load_dwordx4 {V(16+4*i,4)}, v7, {S(SRC,4)}, {S(SSO)} offen offset:{i*128}")
        a.I(f"s_mul_i32 {S(SDO)}, {S(SG)}, 163840")
        a.I(f"s_lshr_b32 {S(ST0)}, {S(SM)}, 1")
        a.I(f"s_mul_i32 {S(ST0)}, {S(ST0)}, 20480")
        a.I(f"s_add_u32 {S(SDO)}, {S(SDO)}, {S(ST0)}")
        a.I(f"s_and_b32 {S(ST0)}, {S(SM)}, 1")
        a.I(f"s_lshl_b32 {S(ST0)}, {S(ST0)}, 7")
        a.I(f"s_add_u32 {S(SDO)}, {S(SDO)}, {S(ST0)}")
        a.I(f"s_add_u32 {S(SDO)}, {S(SDO)}, {XP}")
        a.I("v_mov_b32 v10, 0")
        a.I("v_mov_b32 v11, 0")
        a.drain_vm()
        for i in range(10):
            a.I(f"buffer_store_dwordx4 {V(16+4*i,4)}, v8, {S(WS,4)}, {S(SDO)} offen {st_mod}")
            a.I(f"s_add_u32 {S(SDO)}, {S(SDO)}, 2048")
            for q in range(4):
                a.I(f"v_dot2c_f32_bf16 v10, {V(16+4*i+q)}, v4")
                a.I(f"v_dot2c_f32_bf16 v11, {V(16+4*i+q)}, {V(16+4*i+q)}")
        for r in (10, 11):
            a.I(f"v_add_f32_dpp {V(r)}, {V(r)}, {V(r)} row_ror:8 row_mask:0xf bank_mask:0xf")
        for ins in ("v_permlane16_swap_b32", "v_permlane32_swap_b32"):
            a.I("v_mov_b32 v12, v10")
            a.I("v_mov_b32 v13, v11")
            a.I(f"{ins} v10, v12")
            a.I(f"{ins} v11, v13")
            a.I("v_add_f32 v10, v10, v12")
            a.I("v_add_f32 v11, v11, v13")
        a.I("v_cmp_eq_u32 vcc, 0, v6")
        a.I("v_cndmask_b32 v10, 0, v10, vcc")
        a.I("v_cndmask_b32 v11, 0, v11, vcc")
        a.I("v_lshlrev_b32 v8, 3, v5")
        a.I("v_lshl_add_u32 v8, v6, 10, v8")
        a.I(f"s_lshl_b32 {S(SDO)}, {S(SG)}, 13")
        a.I(f"s_lshl_b32 {S(ST0)}, {S(SM)}, 6")
        a.I(f"s_add_u32 {S(SDO)}, {S(SDO)}, {S(ST0)}")
        a.I(f"s_add_u32 {S(SDO)}, {S(SDO)}, {ST}")
        a.I(f"buffer_store_dwordx2 v[10:11], v8, {S(WS,4)}, {S(SDO)} offen {st_mod}")

    a.I(f"s_cmp_eq_u32 {S(SW)}, 3")
    a.I(f"s_cbranch_scc1 {name}_w3")
    a.I(f"s_cmp_eq_u32 {S(SW)}, 2")
    a.I(f"s_cbranch_scc1 {name}_w2")
    w1_job()
    a.flush_hazards()
    a.label(f"{name}_w2")
    w3_job()
    a.I(f"s_cmp_eq_u32 {S(SW)}, 2")
    a.I(f"s_cbranch_scc0 {name}_end")
    n640_job(8, 640, 4, 25, W2P, 102400, f"{name}_w2done")
    a.I(f"s_branch {name}_end")
    a.label(f"{name}_w3")
    x_job()
    n640_job(16, 1536, 8, 30, W4P, 245760, f"{name}_w4done")
    a.I(f"s_cmp_ge_u32 s2, {F_END // 1024}")
    a.I(f"s_cbranch_scc1 {name}_end")
    for q in range(4):
        a.I(f"v_mov_b32 {V(16+q)}, 0")
    a.I(f"s_lshl_b32 {S(ST0)}, s2, 10")
    a.I(f"buffer_store_dwordx4 v[16:19], v3, {S(WS,4)}, {S(ST0)} offen {st_mod}")
    a.label(f"{name}_end")
    a.I("s_endpgm")


def kd(name, vgpr, accum, sgpr=102):
    return f"""
.amdhsa_kernel {name}
  .amdhsa_next_free_vgpr {vgpr}
  .amdhsa_next_free_sgpr {sgpr}
  .amdhsa_accum_offset {accum}
  .amdhsa_group_segment_fixed_size 0
  .amdhsa_kernarg_size 80
  .amdhsa_user_sgpr_count 2
  .amdhsa_user_sgpr_kernarg_segment_ptr 1
  .amdhsa_system_sgpr_workgroup_id_x 1
.end_amdhsa_kernel
"""
```

```python
WS_BYTES = 268435456
F_ROW = 0x0000
F_XCC = 0x1000
F_COL = 0x2000
CS1 = 0x30000
CS3 = 0x50000
KVS = 0x70000
ST = 0x260000
W1P = 0x300000
W3P = 0x580000
W2P = 0x940000
W4P = 0xA10000
XP = 0xC00000
XP_SZ = 0x280000
OP = 0x1600000
HP = 0x1B00000
HP_SZ = 0x600000
STAMP = 0x2800000


def w1_col(m, T, j):
    if T < 5:
        c = 16 * T + j
        return 640 + 40 * m + c if c < 40 else 1280 + 40 * m + c - 40
    if T == 5:
        return 40 * m + j
    if T == 6:
        return 40 * m + 20 + j
    if j < 4:
        return 40 * m + 16 + j
    if j < 8:
        return 40 * m + 32 + j
    return None


def w1_frag(ks, T):
    return ks * 5 + T if T < 5 else 100 + ks * 3 + T - 5


def w3_frag(p, ks, T):
    return 8 * ks + 4 * p + T if p < 2 else 160 + 4 * ks + T


def w3_col(m, p, T, j):
    return 96 * m + 32 * p + 8 * (j >> 2) + 4 * (T & 1) + (j & 3)


def w2_col(sl, T, j):
    if T < 4:
        return 80 * sl + 32 * (T >> 1) + 8 * (j >> 2) + 4 * (T & 1) + (j & 3)
    return 80 * sl + 64 + j
```

```python
from asmlib import *
from layout import *
from gen_pack import ids, srd, OOB

RING = 144
L_MISC = RING * 1024
L_CS3 = L_MISC
L_KVA = L_MISC + 768
L_STW = L_KVA + 3328
L_PQT = L_STW + 1024
L_END = L_PQT + 4 * 2560
assert L_END <= 163840
L_KVW = 128 * 1024
L_EX = 80 * 1024
LDS_BYTES = 163840

WS, OUT, WSZ = 4, 8, 44
sG, sM, sW, sHF, sSL, sLAY, sFAST, sSEQ = 12, 13, 14, 15, 16, 17, 18, 19
sW1, sW3, sW2, sW4 = 20, 21, 22, 23
sXA, sXD, sSTR, sSTW = 24, 25, 26, 27
sOW, sOA, sHW, sHA = 28, 29, 33, 34
sKVW, sKVR, sRFW, sRFP, sCFW, sCFP = 38, 39, 40, 41, 42, 43
sT0, sT1, sT2, sT3 = 48, 49, 50, 51
sA, sB, sC = 52, 53, 54
sEX = 56
sLOG2E, sEPS6, sC0, sC1 = 60, 62, 64, 66
sMLO16, sM31 = 68, 70
sSPIN, sWV16 = 72, 73
sSTAMP = 74
sTM = 76

vL16, vLANE, vR1, vR2 = 0, 1, 2, 3
vRES = 4
vCS1 = 14
vXD4, vXD2, vSTL, vHST, vOST = 18, 19, 20, 21, 22
vB0, vB1, vB2, vKA0, vKA1 = 23, 24, 25, 26, 27
vPQW, vPQR0, vPQR1, vSTWW, vSTWR = 28, 29, 30, 31, 32
vCS3R, vT16, vKAW, vPOLL, vONES = 33, 34, 35, 36, 37
vPTX, vPTO, vPTH = 38, 39, 40
vTMP = 41
W0 = 44


def f2u(x):
    import struct
    return struct.unpack('<I', struct.pack('<f', x))[0]


class Main:
    def __init__(self, a, name, cfg):
        self.a = a
        self.name = name
        self.cfg = cfg
        self.nlab = 0
        self.nstamp = 0

    def lab(self, p):
        self.nlab += 1
        return f"{self.name}_{p}{self.nlab}"

    def stamp(self, idx):
        if not self.cfg.get('stamps'):
            return
        a = self.a
        a.I(f"{'s_memrealtime' if self.cfg['stamps'] == 2 else 's_memtime'} {S(sTM,2)}")
        a.drain_lg(force=True)
        a.I(f"v_mov_b32 {V(vTMP)}, {S(sTM)}")
        a.I(f"v_mov_b32 {V(vTMP+1)}, 0")
        a.I("s_mov_b64 exec, 1")
        a.I(f"buffer_store_dword {V(vTMP)}, {V(vTMP+1)}, {S(WS,4)}, {S(sSTAMP)} offen offset:{idx*4}", count=False)
        a.I("s_mov_b64 exec, -1")

    def ring_addr(self, slot):
        off = slot * 1024
        if off < 65536:
            return vL16, off
        if off < 131072:
            return vR1, off - 65536
        return vR2, off - 131072

    def dma_step(self, sbase, j, srd_=WS):
        a = self.a
        out = []

        def first():
            a.I(f"s_add_u32 {S(sC)}, {S(sbase)}, {j*16384}")
            a.I(f"s_add_u32 m0, {S(sWV16)}, {((16*j) % RING)*1024}")
            return a.I(f"buffer_load_dwordx4 {V(vL16)}, {S(srd_,4)}, {S(sC)} offen lds")
        out.append(first)
        for q in (1, 2, 3):
            out.append(lambda q=q: a.I(f"buffer_load_dwordx4 {V(vL16)}, {S(srd_,4)}, {S(sC)} offen offset:{q*1024} lds"))
        return out

    def seq_loads(self, sbase, srun, regs, mod=""):
        a = self.a
        out = []
        for i, r in enumerate(regs):
            def f(i=i, r=r):
                if i == 0:
                    a.I(f"s_mov_b32 {S(srun)}, {S(sbase)}")
                elif i % 4 == 0:
                    a.I(f"s_add_u32 {S(srun)}, {S(srun)}, 4096")
                return a.I(f"buffer_load_dwordx4 {R(r,4)}, {V(vL16)}, {S(WS,4)}, {S(srun)} offen offset:{(i%4)*1024} {mod}")
            out.append(f)
        return out

    def poll(self, sbase, starget, plus=0):
        a = self.a
        L, D = self.lab("poll"), self.lab("pdone")
        if plus:
            a.I(f"s_add_u32 {S(sT0)}, {S(starget)}, {plus}")
            starget = sT0
        a.I(f"s_mov_b32 {S(sSPIN)}, 0x20000")
        a.flush_hazards()
        a.label(L)
        a.I(f"buffer_load_dword {V(vTMP)}, {V(vPOLL)}, {S(WS,4)}, {S(sbase)} offen sc1")
        a.drain_vm(force=True)
        a.I(f"v_cmp_gt_u32 vcc, {S(starget)}, {V(vTMP)}")
        a.I(f"s_cbranch_vccz {D}")
        a.I(f"s_sub_u32 {S(sSPIN)}, {S(sSPIN)}, 1")
        a.I(f"s_cbranch_scc0 {L}")
        a.I(f"s_branch {self.name}_end")
        a.label(D)

    def publish_row(self):
        a = self.a
        a.I(f"s_add_u32 {S(sSEQ)}, {S(sSEQ)}, 1")
        a.drain_vm(force=True)
        a.I("s_barrier")
        L = self.lab("nf")
        a.I(f"s_cmp_lg_u32 {S(sW)}, 0")
        a.I(f"s_cbranch_scc1 {L}")
        a.I(f"v_mov_b32 {V(vTMP)}, {S(sSEQ)}")
        a.I(f"v_mov_b32 {V(vTMP+1)}, 0")
        a.I("s_mov_b64 exec, 1")
        a.dual(S(sFAST), lambda mod: a.I(f"buffer_store_dword {V(vTMP)}, {V(vTMP+1)}, {S(WS,4)}, {S(sRFW)} offen {mod}", count=False), self.lab("fl"))
        a.I("s_mov_b64 exec, -1")
        a.label(L)

    def stats_loads(self, sbase_off, dst):
        a = self.a
        if sbase_off:
            a.I(f"s_add_u32 {S(sT0)}, {S(sSTR)}, {sbase_off}")
        sb = sT0 if sbase_off else sSTR
        t = None
        for q in range(4):
            t = a.I(f"buffer_load_dwordx2 {V(dst+2*q,2)}, {V(vSTL)}, {S(WS,4)}, {S(sb)} offen offset:{q*1024} sc1")
        return t

    def stats_reduce(self, raw, tok):
        a = self.a
        s = []
        s.append(lambda: (a.wait(tok), a.I(f"v_pk_add_f32 {V(raw,2)}, {V(raw,2)}, {V(raw+2,2)}")))
        s.append(lambda: a.I(f"v_pk_add_f32 {V(raw+4,2)}, {V(raw+4,2)}, {V(raw+6,2)}"))
        s.append(lambda: a.I(f"v_pk_add_f32 {V(raw,2)}, {V(raw,2)}, {V(raw+4,2)}"))
        s.append(lambda: a.I(f"v_mov_b32 {V(raw+2)}, {V(raw)}"))
        s.append(lambda: a.I(f"v_mov_b32 {V(raw+3)}, {V(raw+1)}"))
        s.append(lambda: a.I(f"v_permlane32_swap_b32 {V(raw)}, {V(raw+2)}"))
        s.append(lambda: a.I(f"v_permlane32_swap_b32 {V(raw+1)}, {V(raw+3)}"))
        s.append(lambda: a.I(f"v_pk_add_f32 {V(raw,2)}, {V(raw,2)}, {V(raw+2,2)}"))
        s.append(lambda: a.I(f"v_mul_f32 {V(raw+2)}, 0x{f2u(-1.0/640):x}, {V(raw)}"))
        s.append(lambda: a.I(f"v_mul_f32 {V(raw+3)}, 0x{f2u(1.0/640):x}, {V(raw+1)}"))
        s.append(lambda: a.I(f"v_fma_f32 {V(raw+3)}, -{V(raw+2)}, {V(raw+2)}, {V(raw+3)}"))
        s.append(lambda: a.I(f"v_max_f32 {V(raw+3)}, 0, {V(raw+3)}"))
        s.append(lambda: a.I(f"v_add_f32 {V(raw+3)}, 0x{f2u(1e-5):x}, {V(raw+3)}"))
        s.append(lambda: a.I(f"v_rsq_f32 {V(raw)}, {V(raw+3)}"))
        s.append(lambda: a.I(f"v_mov_b32 {V(raw+1)}, {V(raw+2)}"))
        s.append(lambda: a.I(f"v_mul_f32 {V(raw+2)}, {V(raw+3)}, {V(raw)}"))
        return s

    def ring_gemm(self, NT, acc, wbuf, w_is_a, sAbase, sWsrc, nsteps, pre_steps, a_first, a_rate, dma_plan, barriers,
                  fill, entry_label=None, stats_off=0, stats_dst=None):
        a = self.a
        NKS = 40
        if entry_label:
            a.flush_hazards()
            a.label(entry_label)
        n0 = a.vm_issued
        st_tok = self.stats_loads(stats_off, stats_dst)
        aregs = [('a', 4 * k) for k in range(NKS)]
        al = self.seq_loads(sAbase, sA, aregs, "sc1")
        atok = {}
        na = 0
        for _ in range(a_first):
            atok[na] = al[na]()
            na += 1
        a.I(f"s_waitcnt vmcnt({a.vm_issued - n0})")
        a.vm_done = max(a.vm_done, n0)
        a.I("s_barrier")
        rtok = {}

        def rd(ks, T):
            f = ks * NT + T
            v, off = self.ring_addr(f % RING)
            rtok[(ks, T)] = a.I(f"ds_read_b128 {V(wbuf + ((ks % 3) * NT + T) * 4, 4)}, {V(v)} offset:{off}")
        for ks in (0, 1):
            for T in range(NT):
                rd(ks, T)
        steps = {}
        nissued = {}
        first_read_ks = lambda j: max(0, (16 * j) // NT - 2)
        done_ks = lambda j: (16 * j + 15) // NT
        issue_at = dict(dma_plan)
        for j in range(pre_steps, nsteps):
            assert j in issue_at, j
            if j >= RING // 16:
                jj = j - RING // 16
                assert any(done_ks(jj) <= b <= issue_at[j] for b in barriers), ("WAR", j)
            assert any(issue_at[j] < b <= first_read_ks(j) for b in barriers), ("RAW", j)
        acc_a = 0.0
        pend = []
        fill = {k: list(v) for k, v in fill.items()}
        fill_st = self.stats_reduce(stats_dst, st_tok)
        for ks in range(NKS):
            toks = [atok[ks]] + [rtok[(ks, T)] for T in range(NT)]
            if ks in barriers:
                nxt = min([b for b in barriers if b > ks], default=1000)
                for j in issue_at:
                    if first_read_ks(j) < nxt:
                        assert nissued.get(j, 0) == 4, ("RAW incomplete", j, ks)
                        toks.append(steps[j])
            a.wait(*toks)
            if ks in barriers:
                a.I("s_barrier")
            q = []
            acc_a += a_rate
            while acc_a >= 1.0 and na < NKS:
                q.append(('A', na))
                na += 1
                acc_a -= 1.0
            for j in sorted(issue_at):
                if issue_at[j] == ks:
                    for i, c in enumerate(self.dma_step(sWsrc, j)):
                        pend.append(('D', j, c))
            take = min(len(pend), self.cfg.get('dma_per_ks', 2))
            q += pend[:take]
            pend = pend[take:]
            q += [('F', c) for c in fill.get(ks, [])]
            if ks >= 6:
                q += [('F', c) for c in fill_st[:3]]
                fill_st = fill_st[3:]
            per = -(-len(q) // NT)
            for T in range(NT):
                w = V(wbuf + ((ks % 3) * NT + T) * 4, 4)
                x = A(4 * ks, 4)
                d = V(acc + 16 * T, 16)
                c = d if ks else "0"
                if w_is_a:
                    a.I(f"v_mfma_f32_32x32x16_bf16 {d}, {w}, {x}, {c}")
                else:
                    a.I(f"v_mfma_f32_32x32x16_bf16 {d}, {x}, {w}, {c}")
                if ks + 2 < NKS:
                    rd(ks + 2, T)
                for it in q[:per]:
                    if it[0] == 'A':
                        atok[it[1]] = al[it[1]]()
                    elif it[0] == 'D':
                        steps[it[1]] = it[2]()
                        nissued[it[1]] = nissued.get(it[1], 0) + 1
                    else:
                        it[1]()
                q = q[per:]
        assert not pend and not fill_st and na == NKS

    def ksplit_gemm(self, NK, wregs, aring, sAb, a_first, bg, bg_start):
        a = self.a
        acc = W0
        recv = W0 + 80
        tot = 4 * NK
        loads = []
        for r in range(4):
            regs = [aring[(r * NK + k) % len(aring)] for k in range(NK)]
            loads += self.seq_loads(sAb + r, sA, regs, "sc1")
        atok = {}
        na = 0
        for _ in range(a_first):
            atok[na] = loads[na]()
            na += 1
        bg = list(bg)
        rtoks = []
        for r in range(4):
            for ks in range(NK):
                i = r * NK + ks
                a.wait(atok[i])
                q = []
                if na < tot:
                    assert na - len(aring) < i
                    q.append(('A', na))
                    na += 1
                if i >= bg_start and bg:
                    q.append(('F', bg.pop(0)))
                if r > 0 and ks == 0:
                    q.append(('F', lambda r=r: a.I(f"v_add_u32 {V(vTMP)}, {S(sEX + r - 1)}, {V(vL16)}")))
                if r > 0 and ks == 1:
                    for T in range(5):
                        q.append(('F', lambda r=r, T=T: a.I(
                            f"ds_write_b128 {V(vTMP)}, {V(acc + 20 * (r - 1) + 4 * T, 4)} offset:{T*1024}")))
                if r == 3 and ks == 2:
                    def bar():
                        a.drain_lg()
                        a.I("s_barrier")
                        a.I(f"s_mul_i32 {S(sT0)}, {S(sW)}, 15360")
                        a.I(f"s_add_u32 {S(sT0)}, {S(sT0)}, {L_EX}")
                        a.I(f"v_add_u32 {V(vTMP)}, {S(sT0)}, {V(vL16)}")
                    q.append(('F', bar))
                if r == 3 and ks in (3, 4):
                    lo, hi = (0, 8) if ks == 3 else (8, 15)
                    for z in range(lo, hi):
                        q.append(('F', lambda z=z: rtoks.append(
                            a.I(f"ds_read_b128 {V(recv + 4 * z, 4)}, {V(vTMP)} offset:{z*1024}"))))
                per = -(-len(q) // 5)
                x = R(aring[i % len(aring)], 4)
                for T in range(5):
                    d = V(acc + 20 * r + 4 * T, 4)
                    c = d if ks else "0"
                    a.I(f"v_mfma_f32_16x16x32_bf16 {d}, {R(wregs[ks * 5 + T], 4)}, {x}, {c}")
                    for it in q[:per]:
                        if it[0] == 'A':
                            atok[it[1]] = loads[it[1]]()
                        else:
                            it[1]()
                    q = q[per:]
        for c in bg:
            c()
        a.wait(rtoks[9])
        for z in range(10):
            a.I(f"v_pk_add_f32 {V(recv+2*z,2)}, {V(recv+2*z,2)}, {V(recv+20+2*z,2)}")
        a.wait(rtoks[14])
        for z in range(10):
            a.I(f"v_pk_add_f32 {V(recv+2*z,2)}, {V(recv+2*z,2)}, {V(recv+40+2*z,2)}")

    def resid_epilogue(self, last_capable):
        a = self.a
        acc, recv, t = W0 + 60, W0 + 80, W0 + 100
        for z in range(10):
            a.I(f"v_lshlrev_b32 {V(t+2*z)}, 16, {V(vRES+z)}")
            a.I(f"v_and_b32 {V(t+2*z+1)}, 0xffff0000, {V(vRES+z)}")
        for z in range(10):
            a.I(f"v_pk_add_f32 {V(recv+2*z,2)}, {V(recv+2*z,2)}, {V(t+2*z,2)}")
        for z in range(10):
            a.I(f"v_pk_add_f32 {V(recv+2*z,2)}, {V(recv+2*z,2)}, {V(acc+2*z,2)}")
        for z in range(10):
            a.I(f"v_cvt_pk_bf16_f32 {V(vRES+z)}, {V(recv+2*z)}, {V(recv+2*z+1)}")
        Lout = self.lab("out")
        if last_capable:
            a.I(f"s_cmp_lg_u32 {S(sLAY)}, 0")
            a.I(f"s_cbranch_scc1 {Lout}")
        st = a.save()

        def stores(mod):
            a.I(f"buffer_store_dwordx4 {V(vRES,4)}, {V(vXD4)}, {S(WS,4)}, {S(sXD)} offen {mod}")
            a.I(f"buffer_store_dwordx4 {V(vRES+4,4)}, {V(vXD4)}, {S(WS,4)}, {S(sXD)} offen offset:2048 {mod}")
            a.I(f"buffer_store_dwordx2 {V(vRES+8,2)}, {V(vXD2)}, {S(WS,4)}, {S(sXD)} offen {mod}")
        a.I(f"s_add_u32 {S(sXD)}, {S(sXD)}, {XP_SZ}")
        a.dual(S(sFAST), stores, self.lab("xs"))
        a.I(f"v_mov_b32 {V(t)}, 0")
        a.I(f"v_mov_b32 {V(t+1)}, 0")
        for z in range(10):
            a.I(f"v_dot2c_f32_bf16 {V(t)}, {V(vRES+z)}, {V(vONES)}")
            a.I(f"v_dot2c_f32_bf16 {V(t+1)}, {V(vRES+z)}, {V(vRES+z)}")
        for ins in ("v_permlane16_swap_b32", "v_permlane32_swap_b32"):
            a.I(f"v_mov_b32 {V(t+2)}, {V(t)}")
            a.I(f"v_mov_b32 {V(t+3)}, {V(t+1)}")
            a.I(f"{ins} {V(t)}, {V(t+2)}")
            a.I(f"{ins} {V(t+1)}, {V(t+3)}")
            a.I(f"v_pk_add_f32 {V(t,2)}, {V(t,2)}, {V(t+2,2)}")
        a.I(f"s_add_u32 {S(sSTW)}, {S(sSTW)}, 0x20000")
        a.I(f"v_lshlrev_b32 {V(t+2)}, 3, {V(vLANE)}")
        a.I("s_mov_b64 exec, 0xffff")
        a.dual(S(sFAST), lambda mod: a.I(f"buffer_store_dwordx2 {V(t,2)}, {V(t+2)}, {S(WS,4)}, {S(sSTW)} offen {mod}"), self.lab("ss"))
        a.I("s_mov_b64 exec, -1")
        self.publish_row()
        return Lout, st

    def gen(self):
        a, name, cfg = self.a, self.name, self.cfg
        a.raw(f".globl {name}\n.p2align 8\n.type {name},@function\n{name}:")
        a.I("s_cmp_ge_u32 s2, 256")
        a.I(f"s_cbranch_scc1 {name}_end")
        if cfg.get('stamps'):
            a.I("s_memrealtime s[78:79]")
            a.I("s_memtime s[80:81]")
        a.I("s_load_dwordx2 s[48:49], s[0:1], 56")
        a.I("s_load_dwordx2 s[50:51], s[0:1], 72")
        ids(a, sG, sM, sT0 + 4)
        a.I(f"v_lshrrev_b32 {V(vTMP)}, 6, v0")
        a.I(f"v_lshlrev_b32 {V(vT16)}, 4, v0")
        a.I(f"v_readfirstlane_b32 {S(sW)}, {V(vTMP)}")
        a.I(f"v_mul_u32_u24 {V(vTMP)}, 205, v0")
        a.I(f"v_lshrrev_b32 {V(vTMP)}, 10, {V(vTMP)}")
        a.I(f"v_mul_u32_u24 {V(vTMP+1)}, 5, {V(vTMP)}")
        a.I(f"v_sub_u32 {V(vTMP+1)}, v0, {V(vTMP+1)}")
        a.I(f"v_lshlrev_b32 {V(vTMP+1)}, 3, {V(vTMP+1)}")
        a.I(f"v_lshl_add_u32 {V(vKAW)}, {V(vTMP)}, 6, {V(vTMP+1)}")
        a.I(f"v_add_u32 {V(vKAW)}, {L_KVA}, {V(vKAW)}")
        a.I(f"v_and_b32 {V(vLANE)}, 63, v0")
        a.I(f"v_lshlrev_b32 {V(vL16)}, 4, {V(vLANE)}")
        a.I(f"s_lshr_b32 {S(sHF)}, {S(sM)}, 3")
        a.I(f"s_and_b32 {S(sSL)}, {S(sM)}, 7")
        a.I(f"s_lshl_b32 {S(sWV16)}, {S(sW)}, 12")

        def lin(dst, terms, const):
            first = True
            for r, mul in terms:
                if first:
                    a.I(f"s_mul_i32 {S(dst)}, {S(r)}, {mul}")
                    first = False
                else:
                    a.I(f"s_mul_i32 {S(sT3+4)}, {S(r)}, {mul}")
                    a.I(f"s_add_u32 {S(dst)}, {S(dst)}, {S(sT3+4)}")
            a.I(f"s_add_u32 {S(dst)}, {S(dst)}, {const}")
        ws_ = 0 if cfg.get('wsame') else 1
        lin(sW1, [(sM, 163840 * ws_), (sW, 4096)], W1P)
        lin(sXA, [(sG, 163840), (sW, 40960)], XP)
        lin(sSTR, [(sG, 8192), (sW, 256)], ST)
        a.I("s_waitcnt lgkmcnt(0)")
        srd(a, OUT, 48, 2048 * 1280)
        srd(a, WS, 50, WS_BYTES)
        srd(a, WSZ, 50, WS_BYTES)
        for j in range(cfg['w1_pre']):
            for c in self.dma_step(sW1, j):
                c()
        lin(sW3, [(sM, 245760 * ws_), (sW, 4096)], W3P)
        lin(sW2, [(sSL, 102400 * ws_), (sW, 25600)], W2P)
        lin(sW4, [(sSL, 245760 * ws_), (sW, 61440)], W4P)
        a.I(f"s_lshr_b32 {S(sT0)}, {S(sW)}, 1")
        a.I(f"s_and_b32 {S(sT1)}, {S(sW)}, 1")
        lin(sXD, [(sG, 163840), (sHF, 81920), (sT0, 40960), (sT1, 256), (sSL, 5120)], XP)
        lin(sSTW, [(sG, 8192), (sSL, 1024), (sHF, 512), (sW, 128)], ST)
        lin(sOW, [(sG, 163840), (sW, 40960), (sM, 1280)], OP)
        lin(sHW, [(sG, 393216), (sW, 98304), (sM, 3072)], HP)
        for r in range(4):
            a.I(f"s_add_u32 {S(sT0)}, {S(sW)}, {r+1}")
            a.I(f"s_and_b32 {S(sT0)}, {S(sT0)}, 3")
            lin(sOA + r, [(sG, 163840), (sHF, 81920), (sT0, 20480), (sW, 5120)], OP)
            lin(sHA + r, [(sG, 393216), (sHF, 196608), (sT0, 49152), (sW, 12288)], HP)
            if r < 3:
                lin(sEX + r, [(sT0, 15360)], L_EX + r * 5120)
        lin(sKVW, [(sM, 65536), (sG, 4096)], KVP)
        lin(sKVR, [(sM, 65536)], KVP)
        lin(sRFW, [(sG, 128), (sM, 4)], F_ROW)
        lin(sRFP, [(sG, 128)], F_ROW)
        lin(sCFW, [(sM, 2048), (sG, 4)], F_COL)
        lin(sCFP, [(sM, 2048), (sG, 128)], F_COL)
        a.I(f"s_lshl_b32 {S(sSTAMP)}, s2, 10")
        a.I(f"s_lshl_b32 {S(sT0)}, {S(sW)}, 8")
        a.I(f"s_add_u32 {S(sSTAMP)}, {S(sSTAMP)}, {S(sT0)}")
        a.I(f"s_add_u32 {S(sSTAMP)}, {S(sSTAMP)}, {STAMP}")
        a.I(f"s_mov_b32 {S(sLAY)}, 0")
        a.I(f"s_mov_b32 {S(sSEQ)}, 0")
        a.I(f"s_mov_b32 {S(sFAST)}, 0")
        c0 = -2.0 * 1.4426950408889634 * 0.7978845608028654
        for r, val in ((sLOG2E, 1.4426950408889634), (sEPS6, 1e-6), (sC0, c0), (sC1, c0 * 0.044715)):
            a.I(f"s_mov_b32 {S(r)}, 0x{f2u(val):x}")
            a.I(f"s_mov_b32 {S(r+1)}, 0x{f2u(val):x}")
        a.I(f"s_mov_b32 {S(sMLO16)}, 0xffff")
        a.I(f"s_mov_b32 {S(sMLO16+1)}, 0xffff")
        a.I(f"s_mov_b32 {S(sM31)}, 0x80000000")
        a.I(f"s_mov_b32 {S(sM31+1)}, 0x80000000")
        a.I(f"s_getreg_b32 {S(sT2)}, hwreg(HW_REG_XCC_ID, 0, 4)")
        a.I(f"s_add_u32 {S(sT2)}, {S(sT2)}, 1")
        a.I(f"v_mov_b32 {V(vTMP)}, {S(sT2)}")
        a.I(f"v_mov_b32 {V(vTMP+1)}, 0")
        a.I(f"s_add_u32 {S(sT0)}, {S(sRFW)}, {F_XCC - F_ROW}")
        a.I("s_mov_b64 exec, 1")
        a.I(f"buffer_store_dword {V(vTMP)}, {V(vTMP+1)}, {S(WS,4)}, {S(sT0)} offen sc1")
        a.I("s_mov_b64 exec, -1")
        t0, t1, t2, t3 = W0, W0 + 1, W0 + 2, W0 + 3
        j32, hh, t16, g4 = W0 + 4, W0 + 5, W0 + 6, W0 + 7
        a.I(f"v_add_u32 {V(vR1)}, 0x10000, {V(vL16)}")
        a.I(f"v_add_u32 {V(vR2)}, 0x20000, {V(vL16)}")
        a.I(f"v_and_b32 {V(j32)}, 31, {V(vLANE)}")
        a.I(f"v_lshrrev_b32 {V(hh)}, 5, {V(vLANE)}")
        a.I(f"v_and_b32 {V(t16)}, 15, {V(vLANE)}")
        a.I(f"v_lshrrev_b32 {V(g4)}, 4, {V(vLANE)}")
        a.I(f"v_lshlrev_b32 {V(t0)}, 4, {V(t16)}")
        a.I(f"v_lshl_add_u32 {V(vXD4)}, {V(g4)}, 9, {V(t0)}")
        a.I(f"v_lshl_add_u32 {V(vXD2)}, {V(hh)}, 9, {V(t0)}")
        a.I(f"v_and_b32 {V(t1)}, 1, {V(g4)}")
        a.I(f"v_lshl_add_u32 {V(vXD2)}, {V(t1)}, 3, {V(vXD2)}")
        a.I(f"v_add_u32 {V(vXD2)}, 4096, {V(vXD2)}")
        a.I(f"v_lshlrev_b32 {V(vSTL)}, 3, {V(j32)}")
        a.I(f"v_lshl_add_u32 {V(vSTL)}, {V(hh)}, 12, {V(vSTL)}")
        a.I(f"v_lshl_add_u32 {V(t2)}, {V(hh)}, 8, {V(t0)}")
        a.I(f"v_mul_u32_u24 {V(t3)}, 49152, {V(t1)}")
        a.I(f"v_add_u32 {V(vHST)}, {V(t3)}, {V(t2)}")
        a.I(f"v_mul_u32_u24 {V(t3)}, 20480, {V(t1)}")
        a.I(f"v_add_u32 {V(vOST)}, {V(t3)}, {V(t2)}")
        rt = a.I(f"buffer_load_dwordx4 {V(vRES,4)}, {V(vXD4)}, {S(WS,4)}, {S(sXD)} offen")
        a.I(f"buffer_load_dwordx4 {V(vRES+4,4)}, {V(vXD4)}, {S(WS,4)}, {S(sXD)} offen offset:2048")
        a.I(f"buffer_load_dwordx2 {V(vRES+8,2)}, {V(vXD2)}, {S(WS,4)}, {S(sXD)} offen")
        c1 = W0 + 12
        a.I(f"v_lshlrev_b32 {V(t2)}, 4, {V(j32)}")
        a.I(f"v_lshl_add_u32 {V(t2)}, {V(hh)}, 11, {V(t2)}")
        lin(sT0, [(sM, 4096)], CS1)
        for q in range(4):
            a.I(f"buffer_load_dwordx4 {V(c1+4*q,4)}, {V(t2)}, {S(WS,4)}, {S(sT0)} offen offset:{q*512}")
        c3 = W0 + 28
        a.I(f"v_lshrrev_b32 {V(t2)}, 2, {V(vT16)}")
        lin(sT0, [(sM, 6144)], CS3)
        a.I(f"s_add_u32 {S(sT1)}, {S(sT0)}, 3072")
        for q in range(8):
            a.I(f"buffer_load_dword {V(c3+q)}, {V(t2)}, {S(WS,4)}, {S(sT0 if q < 4 else sT1)} offen offset:{(q%4)*768}")
        a.I(f"s_mul_i32 {S(sT0)}, {S(sW)}, 3360")
        a.I(f"s_add_u32 {S(sT0)}, {S(sT0)}, {L_KVW}")
        a.I(f"v_lshlrev_b32 {V(t3)}, 4, {V(hh)}")
        a.I(f"v_add_u32 {V(t3)}, {S(sT0)}, {V(t3)}")
        a.I(f"v_cmp_eq_u32 vcc, 31, {V(j32)}")
        a.I(f"v_cndmask_b32 {V(t0)}, {V(j32)}, 20, vcc")
        a.I(f"v_mul_u32_u24 {V(t0)}, 80, {V(t0)}")
        a.I(f"v_add_u32 {V(vB0)}, {V(t0)}, {V(t3)}")
        a.I(f"v_cndmask_b32 {V(t0)}, {V(j32)}, 40, vcc")
        a.I(f"v_mul_u32_u24 {V(t0)}, 80, {V(t0)}")
        a.I(f"v_add_u32 {V(vB1)}, {V(t0)}, {V(t3)}")
        a.I(f"v_add_u32 {V(vB1)}, {1680 - 1600 - 16}, {V(vB1)}")
        a.I(f"v_mul_u32_u24 {V(t0)}, 80, {V(j32)}")
        a.I(f"v_add_u32 {V(vB2)}, {V(t0)}, {V(t3)}")
        a.I(f"v_add_u32 {V(vB2)}, {1680 - 400 - 16}, {V(vB2)}")
        a.I(f"v_lshrrev_b32 {V(t0)}, 3, {V(j32)}")
        a.I(f"v_and_b32 {V(t1)}, 3, {V(j32)}")
        a.I(f"v_and_b32 {V(t3)}, 4, {V(j32)}")
        a.I(f"v_lshl_add_u32 {V(vKA0)}, {V(t3)}, 1, {V(t1)}")
        a.I(f"v_lshl_add_u32 {V(vKA0)}, {V(t0)}, 2, {V(vKA0)}")
        a.I(f"v_add_u32 {V(vKA1)}, 4, {V(vKA0)}")
        a.I(f"v_add_u32 {V(t3)}, 16, {V(t1)}")
        a.I(f"v_cmp_eq_u32 vcc, 2, {V(t0)}")
        a.I(f"v_cndmask_b32 {V(vKA0)}, {V(vKA0)}, {V(t3)}, vcc")
        a.I(f"v_cndmask_b32 {V(vKA1)}, {V(vKA1)}, {V(t1)}, vcc")
        a.I(f"v_cmp_eq_u32 vcc, 3, {V(t0)}")
        a.I(f"v_cndmask_b32 {V(vKA0)}, {V(vKA0)}, 20, vcc")
        a.I(f"v_cndmask_b32 {V(vKA1)}, {V(vKA1)}, 20, vcc")
        a.I(f"v_lshlrev_b32 {V(t3)}, 4, {V(hh)}")
        a.I(f"v_lshl_add_u32 {V(vKA0)}, {V(vKA0)}, 6, {V(t3)}")
        a.I(f"v_lshl_add_u32 {V(vKA1)}, {V(vKA1)}, 6, {V(t3)}")
        a.I(f"v_add_u32 {V(vKA0)}, {L_KVA}, {V(vKA0)}")
        a.I(f"v_add_u32 {V(vKA1)}, {L_KVA + 21*64}, {V(vKA1)}")
        a.I(f"s_mul_i32 {S(sT0)}, {S(sW)}, 2560")
        a.I(f"s_add_u32 {S(sT0)}, {S(sT0)}, {L_PQT}")
        a.I(f"v_lshlrev_b32 {V(t0)}, 3, {V(hh)}")
        a.I(f"v_lshl_add_u32 {V(vPQW)}, {V(j32)}, 6, {V(t0)}")
        a.I(f"v_add_u32 {V(vPQW)}, {S(sT0)}, {V(vPQW)}")
        a.I(f"v_lshrrev_b32 {V(t0)}, 2, {V(t16)}")
        a.I(f"v_and_b32 {V(t1)}, 3, {V(t16)}")
        a.I(f"v_lshlrev_b32 {V(t1)}, 3, {V(t1)}")
        a.I(f"v_lshl_add_u32 {V(vPQR1)}, {V(t0)}, 6, {V(t1)}")
        a.I(f"v_and_b32 {V(t1)}, 16, {V(vLANE)}")
        a.I(f"v_lshl_add_u32 {V(vPQR1)}, {V(t1)}, 1, {V(vPQR1)}")
        a.I(f"v_add_u32 {V(vPQR1)}, {S(sT0)}, {V(vPQR1)}")
        a.I(f"v_lshl_add_u32 {V(vPQR0)}, {V(hh)}, 9, {V(vPQR1)}")
        a.I(f"s_lshl_b32 {S(sT0)}, {S(sW)}, 8")
        a.I(f"s_add_u32 {S(sT0)}, {S(sT0)}, {L_STW}")
        a.I(f"v_lshlrev_b32 {V(vSTWW)}, 2, {V(j32)}")
        a.I(f"v_lshl_add_u32 {V(vSTWW)}, {V(hh)}, 7, {V(vSTWW)}")
        a.I(f"v_add_u32 {V(vSTWW)}, {S(sT0)}, {V(vSTWW)}")
        a.I(f"v_add_u32 {V(vSTWR)}, {S(sT0)}, {V(t3)}")
        a.I(f"v_add_u32 {V(vCS3R)}, {L_CS3}, {V(t3)}")
        a.I(f"v_lshlrev_b32 {V(vPOLL)}, 2, {V(t16)}")
        a.I(f"v_mov_b32 {V(vONES)}, 0x3f803f80")
        a.I(f"v_mov_b32 {V(t3)}, 0x{OOB:x}")
        a.I(f"v_lshrrev_b32 {V(t0)}, 1, {V(vLANE)}")
        a.I(f"v_and_b32 {V(t1)}, 1, {V(vLANE)}")
        a.I(f"v_lshlrev_b32 {V(t1)}, 7, {V(t1)}")
        a.I(f"v_lshl_add_u32 {V(vPTX)}, {V(t0)}, 9, {V(t1)}")
        a.I(f"v_cmp_gt_u32 vcc, 20, {V(vLANE)}")
        a.I(f"v_cndmask_b32 {V(vPTX)}, {V(t3)}, {V(vPTX)}, vcc")
        a.I(f"v_lshlrev_b32 {V(t0)}, 7, {V(j32)}")
        a.I(f"v_mul_u32_u24 {V(t1)}, 20480, {V(hh)}")
        a.I(f"v_add_u32 {V(vPTO)}, {V(t0)}, {V(t1)}")
        a.I(f"v_cmp_gt_u32 vcc, 10, {V(j32)}")
        a.I(f"v_cndmask_b32 {V(vPTO)}, {V(t3)}, {V(vPTO)}, vcc")
        a.I(f"v_mul_u32_u24 {V(t1)}, 49152, {V(hh)}")
        a.I(f"v_add_u32 {V(vPTH)}, {V(t0)}, {V(t1)}")
        a.I(f"v_cmp_gt_u32 vcc, 24, {V(j32)}")
        a.I(f"v_cndmask_b32 {V(vPTH)}, {V(t3)}, {V(vPTH)}, vcc")
        for q in range(4):
            a.I(f"v_mov_b32 {V(W0+40+q)}, 0")
        a.I(f"v_add_u32 {V(t0)}, {L_KVA}, {V(vT16)}")
        a.I(f"v_cmp_gt_u32 vcc, 3328, {V(vT16)}")
        a.I("s_mov_b64 exec, vcc")
        a.I(f"ds_write_b128 {V(t0)}, {V(W0+40,4)}")
        a.I("s_mov_b64 exec, -1")
        a.drain_vm()
        for q in (1, 2, 3):
            a.I(f"v_pk_add_f32 {V(c1,2)}, {V(c1,2)}, {V(c1+4*q,2)}")
            a.I(f"v_pk_add_f32 {V(c1+2,2)}, {V(c1+2,2)}, {V(c1+4*q+2,2)}")
        for q in range(4):
            a.I(f"v_mov_b32 {V(vCS1+q)}, {V(c1+q)}")
        for q in range(4):
            a.I(f"v_permlane32_swap_b32 {V(vCS1+q)}, {V(c1+q)}")
        for q in range(4):
            a.I(f"v_add_f32 {V(vCS1+q)}, {V(vCS1+q)}, {V(c1+q)}")
        for q in range(1, 8):
            a.I(f"v_add_f32 {V(c3)}, {V(c3)}, {V(c3+q)}")
        a.I(f"v_add_u32 {V(t2)}, {L_CS3}, {V(t2)}")
        a.I(f"v_cmp_gt_u32 vcc, 3072, {V(vT16)}")
        a.I("s_mov_b64 exec, vcc")
        a.I(f"ds_write_b32 {V(t2)}, {V(c3)}")
        a.I("s_mov_b64 exec, -1")
        a.drain_lg()
        self.stamp(0)
        a.I(f"s_branch {name}_p1")

        a.flush_hazards()
        a.label(f"{name}_layer")
        self.poll(sRFP, sSEQ)
        self.p1()
        self.p2()
        self.p3()
        self.p4()
        a.label(f"{name}_end")
        a.I("s_endpgm")

    def pretouch(self, voff, sbase, add):
        a = self.a

        def f():
            if add:
                a.I(f"s_add_u32 {S(sT1)}, {S(sbase)}, {add}")
            a.I(f"buffer_load_dword {V(vTMP+2)}, {V(voff)}, {S(WS,4)}, {S(sT1 if add else sbase)} offen sc1")
        return f

    def p1(self):
        a, cfg = self.a, self.cfg
        acc, wb = W0, W0 + 64
        raw = wb + 48
        av, nm = raw + 8, raw + 24
        tmp = nm + 16
        self.w2regs = [('a', 160 + 4 * i) for i in range(24)] + [('v', 252)]
        fill = {}
        fill.setdefault(13, []).append(lambda: a.I(f"v_cndmask_b32 {V(raw+3)}, {V(raw)}, {V(raw+1)}, {S(sT2,2)}"))
        fill[12] = [lambda: a.I(f"s_mov_b32 {S(sT2)}, 0"), lambda: a.I(f"s_mov_b32 {S(sT3)}, -1")]
        fill[13].append(lambda: a.I(f"ds_write_b32 {V(vSTWW)}, {V(raw+3)}"))
        for q in range(4):
            fill.setdefault(15 + q, []).append(lambda q=q: a.I(f"ds_read_b128 {V(av+4*q,4)}, {V(vSTWR)} offset:{32*q}"))
            fill.setdefault(15 + q, []).append(lambda q=q: a.I(f"ds_read_b128 {V(nm+4*q,4)}, {V(vSTWR)} offset:{128+32*q}"))
        k0 = cfg['p1_bg']
        fill.setdefault(k0, []).append(self.pretouch(vPTO, sOW, 0))
        w2l = self.seq_loads(sW2, sB, self.w2regs)
        k = k0 + 1
        while w2l:
            fill.setdefault(k, []).extend(w2l[:2])
            w2l = w2l[2:]
            k += 1
        assert k <= 40
        self.ring_gemm(4, acc, wb, False, sXA, sW1, 10, cfg['w1_pre'], cfg['p1_afirst'], cfg['p1_arate'],
                       cfg['p1_dma'], cfg['p1_bar'], fill, entry_label=f"{self.name}_p1", stats_off=0, stats_dst=raw)
        self.stamp(1)
        a.drain_lg()
        pk = wb

        def ln(T):
            sel = "op_sel:[0,1,0] op_sel_hi:[1,1,1]" if T & 1 else "op_sel:[0,0,0] op_sel_hi:[1,0,1]"
            cs = V(vCS1 + (T & 2), 2)
            for r in range(0, 16, 2):
                x = V(acc + 16 * T + r, 2)
                a.I(f"v_pk_fma_f32 {x}, {V(nm+r,2)}, {cs}, {x} {sel}")
            for r in range(0, 16, 2):
                x = V(acc + 16 * T + r, 2)
                a.I(f"v_pk_mul_f32 {x}, {x}, {V(av+r,2)}")

        def phi(T, dst):
            x0 = acc + 16 * T
            for r in range(16):
                a.I(f"v_min_f32 {V(tmp+r)}, 0, {V(x0+r)}")
            for r in range(0, 16, 2):
                a.I(f"v_pk_mul_f32 {V(tmp+r,2)}, {V(tmp+r,2)}, {S(sLOG2E,2)}")
            for r in range(16):
                a.I(f"v_exp_f32 {V(tmp+r)}, {V(tmp+r)}")
                a.I(f"v_max_f32 {V(dst+r)}, 0, {V(x0+r)}")
            for r in range(0, 16, 2):
                a.I(f"v_pk_add_f32 {V(dst+r,2)}, {V(dst+r,2)}, {V(tmp+r,2)}")
            for r in range(0, 16, 2):
                a.I(f"v_pk_add_f32 {V(dst+r,2)}, {V(dst+r,2)}, {S(sEPS6,2)}")

        def pack(T, src):
            for r in range(8):
                a.I(f"v_cvt_pk_bf16_f32 {V(pk+8*T+r)}, {V(src+2*r)}, {V(src+2*r+1)}")
        ln(0)
        phi(0, acc)
        pack(0, acc)
        ln(2)
        pack(2, acc + 32)
        for r in range(8):
            a.I(f"v_cndmask_b32 {V(pk+16+r)}, {V(pk+16+r)}, {V(vONES)}, {S(sM31,2)}")
        D02, D01, D12, D11 = acc, acc + 32, tmp + 32, acc + 16

        def kvm(D, Ta, Tb):
            a.I(f"v_mfma_f32_32x32x16_bf16 {V(D,16)}, {V(pk+8*Ta,4)}, {V(pk+8*Tb,4)}, 0")
            a.I(f"v_mfma_f32_32x32x16_bf16 {V(D,16)}, {V(pk+8*Ta+4,4)}, {V(pk+8*Tb+4,4)}, {V(D,16)}")
        kvm(D02, 0, 2)
        ln(1)
        phi(1, tmp + 16)
        for r in range(16):
            a.I(f"v_cndmask_b32 {V(acc+16+r)}, {V(acc+16+r)}, {V(tmp+16+r)}, {S(sMLO16,2)}")
        pack(1, acc + 16)
        kvm(D01, 0, 1)
        kvm(D12, 1, 2)
        kvm(D11, 1, 1)
        assert tmp + 48 <= 252
        M0, M1, M2 = 0x800FFFFF, 0xFFF00000, 0x01FF0000
        a.exec_mask(M0, M0)
        a.I(f"ds_write_b128 {V(vB0)}, {V(D02,4)}")
        a.I(f"ds_write_b128 {V(vB0)}, {V(D02+4,4)} offset:32")
        a.I("s_mov_b32 exec_hi, 0")
        a.I(f"ds_write_b128 {V(vB0)}, {V(D02+8,4)} offset:64")
        a.exec_mask(0, M1)
        a.I(f"ds_write_b128 {V(vB1)}, {V(D02+8,4)}")
        a.I(f"s_mov_b32 exec_lo, 0x{M1:x}")
        a.I(f"ds_write_b128 {V(vB1)}, {V(D02+12,4)} offset:32")
        a.I(f"ds_write_b128 {V(vB1)}, {V(D12,4)} offset:64")
        a.exec_mask(0, M2)
        a.I(f"ds_write_b128 {V(vB2)}, {V(D01+8,4)}")
        a.I(f"s_mov_b32 exec_lo, 0x{M2:x}")
        a.I(f"ds_write_b128 {V(vB2)}, {V(D01+12,4)} offset:32")
        a.I(f"ds_write_b128 {V(vB2)}, {V(D11,4)} offset:64")
        a.I("s_mov_b64 exec, -1")
        a.drain_lg()
        a.I("s_barrier")
        a.I(f"v_add_u32 {V(vTMP)}, {L_KVW}, {V(vT16)}")
        for q in range(4):
            a.I(f"ds_read_b128 {V(acc+4*q,4)}, {V(vTMP)} offset:{q*3360}")
        a.drain_lg()
        for q in (1, 2, 3):
            a.I(f"v_pk_add_f32 {V(acc,2)}, {V(acc,2)}, {V(acc+4*q,2)}")
            a.I(f"v_pk_add_f32 {V(acc+2,2)}, {V(acc+2,2)}, {V(acc+4*q+2,2)}")
        a.I(f"buffer_store_dwordx4 {V(acc,4)}, {V(vT16)}, {S(WS,4)}, {S(sKVW)} offen sc1")
        ln(3)
        a.drain_vm()
        a.I("s_barrier")
        L = self.lab("nf")
        a.I(f"s_cmp_lg_u32 {S(sW)}, 0")
        a.I(f"s_cbranch_scc1 {L}")
        a.I(f"s_add_u32 {S(sT0)}, {S(sLAY)}, 1")
        a.I(f"v_mov_b32 {V(vTMP)}, {S(sT0)}")
        a.I(f"v_lshlrev_b32 {V(vTMP+1)}, 7, {V(vLANE)}")
        a.I("s_mov_b64 exec, 0xffff")
        a.I(f"buffer_store_dword {V(vTMP)}, {V(vTMP+1)}, {S(WS,4)}, {S(sCFW)} offen sc1", count=False)
        a.I("s_mov_b64 exec, -1")
        a.flush_hazards()
        a.label(L)
        self.stamp(2)
        for j in cfg['w3_at_kvwait']:
            for c in self.dma_step(sW3, j):
                c()
        phi(3, acc + 48)
        pack(3, acc + 48)
        for q in range(4):
            a.I(f"ds_write_b64 {V(vPQW)}, {V(pk+24+2*q,2)} offset:{16*q}")
        a.exec_mask(0xFF00, 0xFF00)
        for q in range(4):
            a.I(f"ds_write_b64 {V(vPQW)}, {V(pk+8+2*q,2)} offset:{1536+16*q}")
        a.I("s_mov_b64 exec, -1")
        pq = acc
        a.drain_lg()
        for h in range(2):
            a.I(f"ds_read_b64_tr_b16 {V(pq+8*h,2)}, {V(vPQR0)} offset:{h*1280}")
            a.I(f"ds_read_b64_tr_b16 {V(pq+8*h+2,2)}, {V(vPQR0)} offset:{h*1280+256}")
            a.I(f"ds_read_b64_tr_b16 {V(pq+8*h+4,2)}, {V(vPQR1)} offset:{h*1280+1024}")
            a.I(f"v_mov_b32 {V(pq+8*h+6)}, 0")
            a.I(f"v_mov_b32 {V(pq+8*h+7)}, 0")
        L = self.lab("xc")
        a.I(f"s_cmp_lg_u32 {S(sLAY)}, 0")
        a.I(f"s_cbranch_scc1 {L}")
        a.I(f"s_add_u32 {S(sT1)}, {S(sRFP)}, {F_XCC - F_ROW}")
        a.I(f"s_mov_b32 {S(sT2)}, 1")
        self.poll(sT1, sT2)
        a.I(f"v_readfirstlane_b32 {S(sT2)}, {V(vTMP)}")
        a.I(f"v_cmp_ne_u32 vcc, {S(sT2)}, {V(vTMP)}")
        a.I("s_cmp_eq_u64 vcc, 0")
        a.I(f"s_cselect_b32 {S(sFAST)}, {1 if cfg.get('fast', 1) else 0}, 0")
        a.flush_hazards()
        a.label(L)
        self.poll(sCFP, sLAY, plus=1)
        self.stamp(3)
        kb = wb
        a.I(f"s_mov_b32 {S(sA)}, {S(sKVR)}")
        toks = []
        for g in range(16):
            toks.append(a.I(f"buffer_load_dwordx4 {V(kb+4*g,4)}, {V(vT16)}, {S(WS,4)}, {S(sA)} offen sc1"))
            if g < 15:
                a.I(f"s_add_u32 {S(sA)}, {S(sA)}, 4096")
        self.pretouch(vPTX, sXD, XP_SZ)()
        for j in cfg['w3_at_kvload']:
            for c in self.dma_step(sW3, j):
                c()
        for g in range(1, 16):
            a.wait(toks[g])
            a.I(f"v_pk_add_f32 {V(kb,2)}, {V(kb,2)}, {V(kb+4*g,2)}")
            a.I(f"v_pk_add_f32 {V(kb+2,2)}, {V(kb+2,2)}, {V(kb+4*g+2,2)}")
        a.I(f"v_cvt_pk_bf16_f32 {V(kb)}, {V(kb)}, {V(kb+1)}")
        a.I(f"v_cvt_pk_bf16_f32 {V(kb+1)}, {V(kb+2)}, {V(kb+3)}")
        a.I(f"ds_write_b64 {V(vKAW)}, {V(kb,2)}")
        a.drain_lg()
        a.I("s_barrier")
        ka = kb + 4
        for h in range(2):
            for s in range(2):
                a.I(f"ds_read_b128 {V(ka+8*h+4*s,4)}, {V(vKA0+h)} offset:{32*s}")
        a.drain_lg()
        Do = acc + 16
        for h in range(2):
            a.I(f"v_mfma_f32_32x32x16_bf16 {V(Do+16*h,16)}, {V(ka+8*h,4)}, {V(pq+8*h,4)}, 0")
        for h in range(2):
            a.I(f"v_mfma_f32_32x32x16_bf16 {V(Do+16*h,16)}, {V(ka+8*h+4,4)}, {V(pq+8*h+4,4)}, {V(Do+16*h,16)}")
        og = kb + 20
        for h in range(2):
            d = Do + 16 * h
            a.I(f"v_add_f32 {V(d+12)}, 0x{f2u(1e-6):x}, {V(d+12)}")
            a.I(f"v_rcp_f32 {V(d+12)}, {V(d+12)}")
        for h in range(2):
            d = Do + 16 * h
            for r in range(0, 12, 2):
                a.I(f"v_pk_mul_f32 {V(d+r,2)}, {V(d+r,2)}, {V(d+12,2)} op_sel_hi:[1,0]")
            for r in range(4):
                a.I(f"v_cvt_pk_bf16_f32 {V(og+4*h+r)}, {V(d+2*r)}, {V(d+2*r+1)}")
            for r in range(2):
                a.I(f"v_cvt_pk_bf16_f32 {V(og+8+2*h+r)}, {V(d+8+2*r)}, {V(d+9+2*r)}")

        def stores(mod):
            a.I(f"buffer_store_dwordx4 {V(og,4)}, {V(vOST)}, {S(WS,4)}, {S(sOW)} offen {mod}")
            a.I(f"buffer_store_dwordx4 {V(og+4,4)}, {V(vOST)}, {S(WS,4)}, {S(sOW)} offen offset:768 {mod}")
            a.I("s_mov_b32 exec_hi, 0")
            a.I(f"buffer_store_dwordx4 {V(og+8,4)}, {V(vOST)}, {S(WS,4)}, {S(sOW)} offen offset:512 {mod}")
            a.I("s_mov_b64 exec, -1")
        a.dual(S(sFAST), stores, self.lab("os"))
        self.publish_row()
        self.stamp(4)

    def p2(self):
        a, cfg = self.a, self.cfg
        self.poll(sRFP, sSEQ)
        self.stamp(5)
        bg = []
        for j in cfg['w3_at_p2']:
            bg += self.dma_step(sW3, j)
        self.ksplit_gemm(5, self.w2regs, [('a', 4 * i) for i in range(20)], sOA, cfg['p2_afirst'], bg, cfg['p2_bg'])
        self.stamp(6)
        self.resid_epilogue(False)
        self.stamp(7)

    def p3(self):
        a, cfg = self.a, self.cfg
        self.poll(sRFP, sSEQ)
        self.stamp(8)
        acc, wb = W0, W0 + 96
        raw = wb + 72
        self.w4regs = [('a', 160 + 4 * i) for i in range(24)] + [('a', 4 * i) for i in range(36)]
        fill = {}
        fill.setdefault(cfg['p3_pt'], []).append(self.pretouch(vPTH, sHW, 0))
        w4l = self.seq_loads(sW4, sB, self.w4regs)
        k = cfg['p3_bg']
        i = 0
        while i < 60 and k < 40:
            for _ in range(cfg['p3_bgrate']):
                if i < 60 and (i < 24 or i - 24 < k):
                    fill.setdefault(k, []).append(w4l[i])
                    i += 1
            k += 1
        rest = w4l[i:]
        a.I(f"s_add_u32 {S(sT2)}, {S(sXA)}, {XP_SZ}")
        pre = len(cfg['w3_at_kvwait']) + len(cfg['w3_at_kvload']) + len(cfg['w3_at_p2'])
        self.ring_gemm(6, acc, wb, True, sT2, sW3, 15, pre, cfg['p3_afirst'], cfg['p3_arate'],
                       cfg['p3_dma'], cfg['p3_bar'], fill, stats_off=0x20000, stats_dst=raw)
        self.stamp(9)
        for c in rest:
            c()
        a.I(f"s_add_u32 {S(sT2)}, {S(sXD)}, {XP_SZ}")
        self.pretouch(vPTX, sT2, 0)()
        cs = wb
        t = wb + 64
        hg = raw + 4
        bc_rstd = f"{V(raw,2)}"
        rtok = {}

        def rdcs(p):
            for u in range(2):
                for q in range(4):
                    rtok[p] = a.I(f"ds_read_b128 {V(cs+32*(p&1)+16*u+4*q,4)}, {V(vCS3R)} offset:{(2*p+u)*128+32*q}")
        rdcs(0)
        rdcs(1)
        a.I(f"s_mov_b32 {S(sA)}, {S(sHW)}")
        for p in range(3):
            a.wait(rtok[p])
            G, U = acc + 32 * p, acc + 32 * p + 16
            cg, cu = cs + 32 * (p & 1), cs + 32 * (p & 1) + 16
            for r in range(0, 16, 2):
                a.I(f"v_pk_fma_f32 {V(G+r,2)}, {V(cg+r,2)}, {bc_rstd}, {V(G+r,2)} op_sel:[0,1,0] op_sel_hi:[1,1,1]")
                a.I(f"v_pk_fma_f32 {V(U+r,2)}, {V(cu+r,2)}, {bc_rstd}, {V(U+r,2)} op_sel:[0,1,0] op_sel_hi:[1,1,1]")
            if p == 0:
                rdcs(2)
            z = cu if p != 0 else t
            for half in range(2):
                r0 = 8 * half
                zz = t
                for r in range(0, 8, 2):
                    a.I(f"v_pk_mul_f32 {V(G+r0+r,2)}, {V(G+r0+r,2)}, {bc_rstd} op_sel_hi:[1,0]")
                for r in range(0, 8, 2):
                    a.I(f"v_pk_mul_f32 {V(zz+r,2)}, {V(G+r0+r,2)}, {V(G+r0+r,2)}")
                for r in range(0, 8, 2):
                    a.I(f"v_pk_mul_f32 {V(zz+r,2)}, {V(zz+r,2)}, {S(sC1,2)}")
                for r in range(0, 8, 2):
                    a.I(f"v_pk_add_f32 {V(zz+r,2)}, {V(zz+r,2)}, {S(sC0,2)}")
                for r in range(0, 8, 2):
                    a.I(f"v_pk_mul_f32 {V(zz+r,2)}, {V(zz+r,2)}, {V(G+r0+r,2)}")
                for r in range(8):
                    a.I(f"v_exp_f32 {V(zz+r)}, {V(zz+r)}")
                    if r & 1:
                        a.I(f"v_pk_mul_f32 {V(U+r0+r-1,2)}, {V(U+r0+r-1,2)}, {V(G+r0+r-1,2)}")
                for r in range(0, 8, 2):
                    a.I(f"v_pk_fma_f32 {V(zz+r,2)}, {V(zz+r,2)}, {V(raw+2,2)}, {V(raw+2,2)} op_sel_hi:[1,0,0]")
                for r in range(8):
                    a.I(f"v_rcp_f32 {V(zz+r)}, {V(zz+r)}")
                for r in range(0, 8, 2):
                    a.I(f"v_pk_mul_f32 {V(U+r0+r,2)}, {V(U+r0+r,2)}, {V(zz+r,2)}")
                for r in range(4):
                    a.I(f"v_cvt_pk_bf16_f32 {V(hg+4*half+r)}, {V(U+r0+2*r)}, {V(U+r0+2*r+1)}")

            def stores(mod, p=p):
                a.I(f"buffer_store_dwordx4 {V(hg,4)}, {V(vHST)}, {S(WS,4)}, {S(sA)} offen offset:{p*1024} {mod}")
                a.I(f"buffer_store_dwordx4 {V(hg+4,4)}, {V(vHST)}, {S(WS,4)}, {S(sA)} offen offset:{p*1024+512} {mod}")
            a.dual(S(sFAST), stores, self.lab("hs"))
        self.publish_row()
        self.stamp(10)

    def p4(self):
        a, cfg, name = self.a, self.cfg, self.name
        a.I(f"s_cmp_eq_u32 {S(sLAY)}, 0")
        a.I(f"s_cselect_b32 {S(WSZ+2)}, {WS_BYTES}, 0")
        self.poll(sRFP, sSEQ)
        self.stamp(11)
        bg = []
        for j in range(cfg['w1_pre']):
            bg += self.dma_step(sW1, j, WSZ)
        aring = [('v', W0 + 140 + 4 * i) for i in range(18)] + [('a', 144 + 4 * i) for i in range(4)]
        self.ksplit_gemm(12, self.w4regs, aring, sHA, cfg['p4_afirst'], bg, cfg['p4_bg'])
        self.stamp(12)
        Lout, st = self.resid_epilogue(True)
        self.stamp(13)
        a.I(f"s_mov_b32 {S(sLAY)}, 1")
        a.I(f"s_add_u32 {S(sXA)}, {S(sXA)}, {2*XP_SZ}")
        a.I(f"s_add_u32 {S(sSTR)}, {S(sSTR)}, 0x40000")
        a.I(f"s_add_u32 {S(sOW)}, {S(sOW)}, {XP_SZ}")
        a.I(f"s_add_u32 {S(sHW)}, {S(sHW)}, {HP_SZ}")
        for r in range(4):
            a.I(f"s_add_u32 {S(sOA+r)}, {S(sOA+r)}, {XP_SZ}")
            a.I(f"s_add_u32 {S(sHA+r)}, {S(sHA+r)}, {HP_SZ}")
        a.I(f"s_add_u32 {S(sKVW)}, {S(sKVW)}, 0x100000")
        a.I(f"s_add_u32 {S(sKVR)}, {S(sKVR)}, 0x100000")
        a.I(f"s_add_u32 {S(sSTAMP)}, {S(sSTAMP)}, 64")
        a.flush_hazards()
        a.I(f"s_branch {name}_layer")
        a.restore(st)
        a.label(Lout)
        t = W0
        a.I(f"v_and_b32 {V(t)}, 15, {V(vLANE)}")
        a.I(f"v_lshrrev_b32 {V(t+1)}, 4, {V(vLANE)}")
        a.I(f"v_mul_u32_u24 {V(t)}, 1280, {V(t)}")
        a.I(f"v_lshl_add_u32 {V(t+2)}, {V(t+1)}, 4, {V(t)}")
        a.I(f"v_lshl_add_u32 {V(t+3)}, {V(t+1)}, 3, {V(t)}")
        a.I(f"s_mul_i32 {S(sT0)}, {S(sG)}, {128*1280}")
        a.I(f"s_mul_i32 {S(sT1)}, {S(sHF)}, {64*1280}")
        a.I(f"s_add_u32 {S(sT0)}, {S(sT0)}, {S(sT1)}")
        a.I(f"s_mul_i32 {S(sT1)}, {S(sW)}, {16*1280}")
        a.I(f"s_add_u32 {S(sT0)}, {S(sT0)}, {S(sT1)}")
        a.I(f"s_mul_i32 {S(sT1)}, {S(sSL)}, 160")
        a.I(f"s_add_u32 {S(sT0)}, {S(sT0)}, {S(sT1)}")
        a.I(f"buffer_store_dwordx4 {V(vRES,4)}, {V(t+2)}, {S(OUT,4)}, {S(sT0)} offen")
        a.I(f"buffer_store_dwordx4 {V(vRES+4,4)}, {V(t+2)}, {S(OUT,4)}, {S(sT0)} offen offset:64")
        a.I(f"buffer_store_dwordx2 {V(vRES+8,2)}, {V(t+3)}, {S(OUT,4)}, {S(sT0)} offen offset:128")
        self.stamp(14)
        if cfg.get('stamps'):
            a.drain_vm(force=True)
            a.I("s_memrealtime s[82:83]")
            a.I("s_memtime s[84:85]")
            a.drain_lg(force=True)
            a.I("s_mov_b64 exec, 1")
            for i, r in enumerate((78, 80, 82, 84)):
                a.I(f"v_mov_b32 {V(vTMP)}, {S(r)}")
                a.I(f"buffer_store_dword {V(vTMP)}, {V(vTMP+1)}, {S(WS,4)}, {S(sSTAMP)} offen offset:{64+i*4}")
```

```python
WS_BYTES = 268435456
F_ROW = 0x0000
F_XCC = 0x1000
F_COL = 0x2000
F_END = 0x12000
CS1 = 0x20000
CS3 = 0x30000
KVP = 0x60000
ST = 0x260000
W1P = 0x300000
W3P = 0x580000
W2P = 0x940000
W4P = 0xA10000
XP = 0xC00000
XP_SZ = 0x280000
OP = 0x1600000
HP = 0x1B00000
HP_SZ = 0x600000
STAMP = 0x2800000


def w1_col(m, T, j):
    if T < 5:
        c = 16 * T + j
        return 640 + 40 * m + c if c < 40 else 1280 + 40 * m + c - 40
    if T == 5:
        return 40 * m + j
    if T == 6:
        return 40 * m + 20 + j
    if j < 4:
        return 40 * m + 16 + j
    if j < 8:
        return 40 * m + 32 + j
    return None


def w1_frag(ks, T):
    return ks * 5 + T if T < 5 else 100 + ks * 3 + T - 5


def w3_frag(p, ks, T):
    return 8 * ks + 4 * p + T if p < 2 else 160 + 4 * ks + T


def w3_col(m, p, T, j):
    return 96 * m + 32 * p + 8 * (j >> 2) + 4 * (T & 1) + (j & 3)


def w2_col(sl, T, j):
    if T < 4:
        return 80 * sl + 32 * (T >> 1) + 8 * (j >> 2) + 4 * (T & 1) + (j & 3)
    return 80 * sl + 64 + j
```

```python
import sys, json
from asmlib import *
from layout import *
from gen_main import kd
from gen_main import Main, LDS_BYTES

KN = "interleave_layers__linear_attn_block__geglu_ffn__prompt"
DEFAULT = dict(
    L=8, G=2, pro_w1=2, h_sc1=3, fast=1, stamps=0, apoll_lead=5,
    p1_afirst=4, p1_agap=2.3, p1_st=40, p1_bar={40: None, 103: 7, 118: 8, 134: 9}, kv_cover=None, kvflag_at=8,
    kvepi_every=36, qepi_every=20,
    p2_afirst=4,
    p3_afirst=4, p3_agap=3.8, p3_st=30, hflag_at=16, hpoll_lead=12, p3epiA_every=20, p3epiB_every=16,
    p3_bar={66: 6, 100: 8, 132: 9, 150: 11, 180: 13, 210: 14},
    p4_afirst=10, p4_midpoll=24, p4_afirst2=2, h2flag_at=4, p4_bar_at=3, p4pub_bar=1, p2pub_bar=0,
    bg=[('p1a', 90, 1, 'PTO', 1), ('kvepi', 0, 0, 'W1', 2), ('p1b', 100, 2.5, 'W1', 1),
        ('p1b', 110, 2.5, 'W2', 20), ('qepi', 0, 0, 'W2', 5), ('kvwait', 0, 0, 'W3', 1), ('kvwait', 0, 0, 'W4', 3),
        ('kvload', 0, 0, 'PTX', 1), ('kvload', 0, 0, 'W3', 1), ('kvload', 0, 0, 'W4', 3),
        ('opub0', 0, 0, 'W3', 1), ('opub0', 0, 0, 'W4', 3), ('p2', 16, 1, 'W3', 1), ('p2pub0', 0, 0, 'W3', 1), ('p2pub0', 0, 0, 'W4', 3),
        ('p3', 2, 5, 'W3', 8),
        ('p3epiA', 0, 0, 'W3', 2), ('p3epiA', 0, 0, 'W4', 8), ('p3', 160, 1.9, 'W4', 40),
        ('p3', 237, 1, 'PTX', 1),
        ('p4', 5, 1, 'W1', 5), ('p4pub0', 0, 0, 'W1', 2)],
)

def build(cfg):
    hdr = open("cdna_kernels/%s.s.ref" % KN).read().split("; Override")[0]
    out = hdr
    out += f"; @launch grid=(256,1,1) block=(256,1,1) lds={LDS_BYTES}\n"
    out += '.amdgcn_target "amdgcn-amd-amdhsa--gfx950"\n.text\n'
    b = Asm()
    Main(b, KN + "_kernel", cfg).gen()
    out += b.text()
    out += '.section .rodata,"a"\n.p2align 6\n'
    out += kd(KN + "_kernel", 512, 256)
    info = dict(max_vm=b.max_vm_out, nops=b.nops, ninstr=sum(b.count.values()))
    return out, info

if __name__ == "__main__":
    cfg = dict(DEFAULT)
    path = sys.argv[1]
    for kv in sys.argv[2:]:
        k, v = kv.split("=", 1)
        cfg[k] = eval(v)
    out, info = build(cfg)
    open(path, "w").write(out)
    print(path, info)
```
